```python
import torch

def _softmax(x, axis=-1):
    return torch.softmax(x, dim=axis)

def _gelu(x):
    return torch.nn.functional.gelu(x, approximate='tanh')

def _silu(x):
    return torch.nn.functional.silu(x)

def _sigmoid(x):
    return torch.sigmoid(x)

def _layernorm(x, axis=-1, eps=1e-05):
    m = x.mean(dim=axis, keepdim=True)
    v = x.var(dim=axis, keepdim=True, unbiased=False)
    return (x - m) / torch.sqrt(v + eps)

def _scatter_add(tgt, idx, src, axis=0):
    return tgt.clone().index_add_(axis, idx, src)

def _segment_sum(src, seg, n):
    out = torch.zeros((n,) + src.shape[1:], dtype=src.dtype)
    return out.index_add_(0, seg, src)

def _pad(x, pw):
    flat = tuple((v for pair in reversed(pw) for v in pair))
    return torch.nn.functional.pad(x, flat)
kernel_name = 'interleave_layers__linear_attn_block__memory_aug_recurrent_mem_tr__prompt'

def setup_inputs():

    _w = lambda a: (lambda t: t.to(torch.bfloat16) if t.is_floating_point() else t)(torch.as_tensor(a))

    def _A_setup():
        B, S, D = (1, 2048, 576)
        return {'x': _w((lambda *s: torch.randn(*s, dtype=torch.bfloat16) * 0.05)(B, S, D)), 'wqkv': _w((lambda *s: torch.randn(*s, dtype=torch.bfloat16) * 0.05)(D, 3 * D)), 'wo': _w((lambda *s: torch.randn(*s, dtype=torch.bfloat16) * 0.05)(D, D))}
    _A_in = _A_setup()

    def _B_setup():
        B, S, Dm = (1, 2048, 576)
        H, Dh = (32, 128)
        M, seg = (8, 32)
        seg = min(seg, S)
        S = S // seg * seg
        return {'x': _w((lambda *s: torch.randn(*s, dtype=torch.bfloat16) * 0.05)(B, S, Dm)), 'mem0': _w((lambda *s: torch.randn(*s, dtype=torch.bfloat16) * 0.8)(B, M, Dm)), 'Wq': _w((lambda *s: torch.randn(*s, dtype=torch.bfloat16) * 1.6)(Dm, H, Dh) * Dm ** (-0.5)), 'Wk': _w((lambda *s: torch.randn(*s, dtype=torch.bfloat16) * 1.6)(Dm, H, Dh) * Dm ** (-0.5)), 'Wv': _w((lambda *s: torch.randn(*s, dtype=torch.bfloat16) * 0.8)(Dm, H, Dh) * Dm ** (-0.5)), 'Wo': _w((lambda *s: torch.randn(*s, dtype=torch.bfloat16) * 0.8)(H, Dh, Dm) * (H * Dh) ** (-0.5)), 'seg_len': seg}
    _B_in = _B_setup()
    return {'A_x': _A_in['x'], 'A_wqkv': _A_in['wqkv'], 'A_wo': _A_in['wo'], 'B_x': _B_in['x'], 'B_mem0': _B_in['mem0'], 'B_Wq': _B_in['Wq'], 'B_Wk': _B_in['Wk'], 'B_Wv': _B_in['Wv'], 'B_Wo': _B_in['Wo'], 'B_seg_len': _B_in['seg_len']}

def reference(A_x, A_wqkv, A_wo, B_x, B_mem0, B_Wq, B_Wk, B_Wv, B_Wo, B_seg_len):

    def _A_ref(x, wqkv, wo):
        B, S, D = x.shape
        H = 32
        Dh = D // H
        qkv = (lambda x, *d: x.permute(*d))((x @ wqkv).reshape(B, S, 3, H, Dh), 2, 0, 3, 1, 4)
        q, k, v = (qkv[0], qkv[1], qkv[2])
        phi = lambda t: torch.where(t > 0, t + 1, torch.exp(t)) + 1e-06
        pq, pk = (phi(q), phi(k))
        kv = torch.einsum('bhsd,bhse->bhde', pk, v)
        z = torch.einsum('bhsd->bhd', pk)
        num = torch.einsum('bhqd,bhde->bhqe', pq, kv)
        den = torch.einsum('bhqd,bhd->bhq', pq, z)[..., None] + 1e-06
        o = num / den
        return (lambda x, *d: x.permute(*d))(o, 0, 2, 1, 3).reshape(B, S, D) @ wo

    def _B_ref(x, mem0, Wq, Wk, Wv, Wo, seg_len):
        B, S, Dm = x.shape
        H, Dh = (Wq.shape[1], Wq.shape[2])
        M = mem0.shape[1]
        scale = Dh ** (-0.5)
        n_seg = S // seg_len
        L = M + seg_len
        idx = torch.arange(L)
        mask = (idx[:, None] < M) | (idx[:, None] >= idx[None, :])
        mem = mem0
        outs = []
        for s in range(n_seg):
            xs = x[:, s * seg_len:(s + 1) * seg_len, :].clone()
            h = torch.concatenate([mem, xs], axis=1)
            q = torch.einsum('btd,dhe->bhte', h, Wq)
            k = torch.einsum('btd,dhe->bhte', h, Wk)
            v = torch.einsum('btd,dhe->bhte', h, Wv)
            scores = torch.einsum('bhqe,bhke->bhqk', q, k) * scale
            scores = torch.where(mask[None, None], scores, -1000000000.0)
            p = _softmax(scores, axis=-1)
            o = torch.einsum('bhqk,bhke->bhqe', p, v)
            o = torch.einsum('bhte,hed->btd', o, Wo)
            mem = o[:, :M, :].clone()
            outs.append(o[:, M:, :])
        return torch.concatenate(outs, axis=1)
    x = A_x
    x = x + _A_ref(_layernorm(x, axis=-1), A_wqkv, A_wo)
    x = x + _B_ref(_layernorm(x, axis=-1), B_mem0, B_Wq, B_Wk, B_Wv, B_Wo, B_seg_len)
    x = x + _A_ref(_layernorm(x, axis=-1), A_wqkv, A_wo)
    x = x + _B_ref(_layernorm(x, axis=-1), B_mem0, B_Wq, B_Wk, B_Wv, B_Wo, B_seg_len)
    return x
```

```python
import re
def regs_of(tok):
    tok = tok.strip()
    m = re.fullmatch(r'-?([va])(\d+)', tok)
    if m: return [(m.group(1), int(m.group(2)))]
    m = re.fullmatch(r'-?([va])\[(\d+):(\d+)\]', tok)
    if m: return [(m.group(1), i) for i in range(int(m.group(2)), int(m.group(3)) + 1)]
    return []
def sregs_of(tok):
    tok = tok.strip()
    if tok == 'vcc': return ['vcc']
    m = re.fullmatch(r's(\d+)', tok)
    if m: return [int(m.group(1))]
    m = re.fullmatch(r's\[(\d+):(\d+)\]', tok)
    if m: return list(range(int(m.group(1)), int(m.group(2)) + 1))
    return []
def R(p, a, n=1): return f"{p}{a}" if n == 1 else f"{p}[{a}:{a+n-1}]"
def v(a, n=1): return R('v', a, n)
def a_(a, n=1): return R('a', a, n)
def s(a, n=1): return R('s', a, n)
TRANS = ('v_exp_f32', 'v_rcp_f32', 'v_rsq_f32', 'v_sqrt_f32', 'v_log_f32')
class Asm:
    def __init__(self):
        self.out = []; self.t = 0; self.w = {}; self.sw = {}; self.st = {}; self.m0 = -99; self.n = 0; self.ex = -99
    def lab(self, name): self.out.append(name + ":"); self.lm = -9
    def uid(self, p): self.n += 1; return f"L{p}{self.n}"
    def raw(self, x): self.out.append(x)
    def fence(self): self("s_nop 7")
    def __call__(self, text):
        for line in text.split("\n"):
            line = line.split(";")[0].strip()
            if not line: continue
            if line.endswith(":"): self.out.append(line); continue
            self.one(line)
    def one(self, line):
        op, _, rest = line.partition(" ")
        toks = [x.strip() for x in re.split(r",\s*", rest)] if rest else []
        if toks:
            last = toks[-1].split(" "); toks = toks[:-1] + [last[0]]; mods = last[1:]
        else: mods = []
        need = 0
        def req(t0, n):
            nonlocal need
            need = max(need, t0 + n + 1 - self.t)
        mf = op.startswith("v_mfma") or op.startswith("v_smfmac")
        valu = op.startswith("v_") and not mf
        mem = op.startswith(("buffer_", "global_", "ds_"))
        dst = []; src = []
        if mf:
            if getattr(self, 'phys', 0): self.t = max(self.t, getattr(self, 'lm', -9) + 4)
            dst = regs_of(toks[0]); ab = regs_of(toks[1]) + regs_of(toks[2]); c = regs_of(toks[3])
            if op.startswith("v_smfmac"): ab += c; c = dst
            for r in ab:
                k = self.w.get(r)
                if k: req(k[1], 8 if k[0] == 'mf' else (3 if k[0] == 'dot' else 2))
            for r in c:
                k = self.w.get(r)
                if k:
                    if k[0] == 'mf':
                        if k[2] != (op, tuple(c)): req(k[1], 6)
                    else: req(k[1], 3 if k[0] == 'dot' else 2)
            if tuple(c) != tuple(dst):
                for r in dst:
                    k = self.w.get(r)
                    if k and k[0] == 'mf': req(k[1], 6)
        elif valu:
            swap = 'permlane' in op
            cmp_ = op.startswith("v_cmp"); rl = op.startswith(("v_readfirstlane", "v_readlane"))
            dst = [] if (cmp_ or rl) else regs_of(toks[0])
            for x in toks[1:]: src += regs_of(x)
            if swap: dst += regs_of(toks[1]); src += regs_of(toks[0])
            if op.startswith(("v_fmac", "v_dot2c")): src += dst
            dpp = any(m.startswith(("row_", "quad_perm")) for m in mods)
            for r in src:
                k = self.w.get(r)
                if not k: continue
                if k[0] == 'mf': req(k[1], 8)
                elif k[0] == 'dot' and not (op.startswith('v_dot') and r in regs_of(toks[-1])): req(k[1], 3)
                elif swap or dpp: req(k[1], 2)
                elif rl or (k[0] == 'tr' and op not in TRANS): req(k[1], 1)
            for r in dst:
                k = self.w.get(r)
                if k and k[0] == 'mf': req(k[1], 8)
                if k and k[0] == 'dot' and not op.startswith('v_dot'): req(k[1], 3)
                if r in self.st: req(self.st[r], 2)
            ss = []
            for x in toks[1:]: ss += sregs_of(x)
            for r in ss:
                if r in self.sw: req(self.sw[r], 2)
        elif mem:
            allr = []
            for x in toks: allr += regs_of(x)
            for r in allr:
                k = self.w.get(r)
                if k and k[0] == 'mf': req(k[1], 8)
                if k and k[0] == 'dot': req(k[1], 3)
            for x in toks:
                for r in sregs_of(x):
                    if r in self.sw: req(self.sw[r], 5)
            if 'lds' in mods: req(self.m0, 1)
        if need > 0:
            while need > 0:
                k = min(need, 16); self.out.append(f"s_nop {k-1}"); self.t += k; need -= k
        if mf: self.lm = self.t
        self.out.append(line)
        if op == "s_nop": self.t += int(toks[0])
        if mf:
            for r in dst: self.w[r] = ('mf', self.t, (op, tuple(dst)))
        elif valu:
            kind = 'tr' if op in TRANS else ('dot' if op.startswith('v_dot') else 'va')
            for r in dst: self.w[r] = (kind, self.t, None)
            if op.startswith(("v_cmp", "v_readfirstlane", "v_readlane")):
                for r in sregs_of(toks[0]): self.sw[r] = self.t
        elif mem:
            if 'store' in op and ('x4' in op or 'x3' in op):
                for r in regs_of(toks[0] if op.startswith('buffer') else toks[1]): self.st[r] = self.t
            if ('load' in op or 'read' in op or 'permute' in op) and 'lds' not in mods:
                for r in regs_of(toks[0]): self.w.pop(r, None)
        elif toks and toks[0] == 'm0': self.m0 = self.t
        self.t += 1
    def text(self): return "\n".join(self.out) + "\n"
```

```python
from gen_common import *
def phi(e, x, t):
    e(f"""v_min_f32 v{t}, 0, v{x}
v_mul_f32 v{t}, 0x3fb8aa3b, v{t}
v_exp_f32 v{t}, v{t}
v_max_f32 v{x}, 0, v{x}
v_add_f32 v{x}, 0x358637bd, v{x}
v_add_f32 v{x}, v{x}, v{t}""")
def role_p1(e, cfg):
    NG, G0, N3 = cfg['ng1'], cfg['g1_first'], cfg['n1_l3']
    W = lambda ks, t: wreg((ks * 4 + t) * 4, 224)
    W2 = lambda ks, t, hi: wreg((ks * 4 + t) * 4 + 2 * hi, 224, 2)
    e.lab("P1")
    srd(e, WT, 8, 576 * 3456); srd(e, XS, 0, 2048 * 1152)
    e(f"s_mul_i32 s{sLds}, s{sW}, 40960\ns_lshl_b32 s35, s33, 2\ns_add_u32 s35, s35, s{sW}\ns_mul_i32 s{sT2}, s35, 36")
    ln_consts(e, 2, 3, 0, 4)
    e(f"s_mul_i32 s41, s32,/*rows*/ 36864".replace("/*rows*/ ", ""))
    ln_load(e, 8, 2, XS, "s41", "")
    for d in range(5):
        e(f"v_add_u32 v50, {64*d}, v0"); divmod_v(e, 51, 52, 50, 10)
        e("v_min_u32 v52, 8, v52"); divmod_v(e, 53, 54, 52, 3)
        e(f"""v_mul_u32_u24 v51, 3456, v51
v_mul_u32_u24 v53, 1152, v53
v_lshl_add_u32 v53, v54, 4, v53
v_add3_u32 v{56+d}, v51, v53, s{sT2}""")
    tr_addr(e, 61, 160, 50, 0)
    e("v_and_b32 v50, 3, v0\nv_min_u32 v51, 2, v50\nv_mul_u32_u24 v51, 48, v51\nv_lshlrev_b32 v50, 3, v50\nv_sub_u32 v62, v61, v50\nv_add3_u32 v62, v62, v51, 32")
    units = [([(56 + d, ks * 32 * 3456, WT) for d in range(5)],
              [(W2(ks, t, hi), 61 if t < 3 else 62, (t * 48 if t < 3 else 0) + hi * 640) for t in range(4) for hi in range(2)]) for ks in range(18)]
    load_units(e, units, 20480)
    e("v_mov_b32 v4, 128"); wait_flags(e, 4, 0, 5, DB)
    e(f"""v_and_b32 v50, 15, v0
v_lshrrev_b32 v51, 4, v0
v_cmp_gt_u32 s[44:45], 8, v50
v_cmp_eq_u32 s[46:47], 10, v50
v_cmp_gt_u32 s[48:49], 2, v50
v_cmp_eq_u32 s[50:51], 1, v51
s_lshl_b32 s{sT}, s{sW}, 7
s_add_u32 s{sT}, s{sT}, 40960
v_lshlrev_b32 v5, 4, v51
v_lshl_add_u32 v5, v50, 1, v5
v_add_u32 v5, s{sT}, v5
v_lshl_add_u32 v6, v50, 2, s{sT}
v_mul_u32_u24 v63, 12, v0
v_min_u32 v4, 23, v0
v_lshlrev_b32 v4, 2, v4
s_mov_b32 s36, 0
s_mov_b32 s37, s32
s_mov_b32 s38, {NG}
s_barrier""")
    KV = 112; Q, K, V, T = 64, 72, 80, 88
    e.lab("P1_layer")
    for i in range(16): e(f"v_mov_b32 v{KV+i}, 0")
    e.lab("P1_seg")
    e("s_cmp_eq_u32 s36, 0\ns_cbranch_scc1 P1_have")
    e(f"s_lshl_b32 s41, s37, 7\ns_add_u32 s41, s41, {F_X2}"); wait_flags(e, 4, "s41", 50)
    e(f"s_mul_i32 s41, s37, 36864\ns_add_u32 s41, s41, {X2}"); ln_load(e, 8, 2, WS, "s41")
    e.lab("P1_have")
    ln_math(e, 8, 44); ln_write(e, 8, 3)
    e("s_waitcnt lgkmcnt(0)\ns_barrier\ns_add_u32 s39, s37, s38\ns_cmp_lg_u32 s36, 0\ns_cbranch_scc1 P1_nopf\ns_cmp_ge_u32 s39, 64\ns_cbranch_scc1 P1_nopf\ns_mul_i32 s41, s39, 36864")
    ln_load(e, 8, 2, XS, "s41", "")
    e.lab("P1_nopf")
    def body(ks, x):
        c = "0" if ks == 0 else None
        for mt in range(2):
            mfma(e, v(Q + 4 * mt, 4), W(ks, 0), x[mt], c)
            for t, r in ((1, K), (2, V), (3, T)): mfma(e, v(r + 4 * mt, 4), x[mt], W(ks, t), c)
    gemm_x(e, 1, 96, body)
    e("s_barrier")
    for i in range(8):
        e(f"v_cndmask_b32 v{96+i}, v{T+i}, 1.0, s[46:47]"); phi(e, T + i, 44 + i % 2)
        e(f"v_cndmask_b32 v{T+i}, v{96+i}, v{T+i}, s[44:45]")
    for i in range(4): cvt(e, 96 + i, T + 2 * i, T + 2 * i + 1)
    e("s_mov_b64 exec, s[48:49]")
    for i in range(4): e(f"ds_write_b16 v5, v{96+i} offset:{(i//2)*64+(i%2)*8}\nds_write_b16_d16_hi v5, v{96+i} offset:{(i//2)*64+(i%2)*8+4}")
    e("s_mov_b64 exec, -1")
    for i in range(8): phi(e, K + i, 44 + i % 2)
    for i in range(4): cvt(e, 100 + i, K + 2 * i, K + 2 * i + 1); cvt(e, 104 + i, V + 2 * i, V + 2 * i + 1)
    e("s_waitcnt lgkmcnt(0)\nds_read_b32 v54, v6\nds_read_b32 v58, v6 offset:64")
    mfma(e, v(KV, 4), v(100, 4), v(104, 4)); mfma(e, v(KV + 4, 4), v(96, 4), v(104, 4))
    mfma(e, v(KV + 8, 4), v(100, 4), v(96, 4)); mfma(e, v(KV + 12, 4), v(96, 4), v(96, 4))
    for i in range(8): phi(e, Q + i, 44 + i % 2)
    for i in range(4): cvt(e, 52 + (i // 2) * 4 + i % 2, Q + 2 * i, Q + 2 * i + 1)
    e(f"""s_lshl_b32 s41, s37, 5
s_add_u32 s41, s41, s35
s_mul_i32 s41, s41, 1536
s_mul_i32 s{sT}, s36, {PQ_L}
s_add_u32 s41, s41, s{sT}
s_add_u32 s41, s41, {PQ}
s_waitcnt lgkmcnt(0)
buffer_store_dwordx3 v[52:54], v63, {s(WS,4)}, s41 offen sc1
buffer_store_dwordx3 v[56:58], v63, {s(WS,4)}, s41 offen offset:768 sc1
s_waitcnt vmcnt(2)
s_mov_b32 s37, s39
s_cmp_lt_u32 s37, 64
s_cbranch_scc1 P1_seg""")
    e(f"""s_mul_i32 s42, s36, {KVP_L}
s_lshl_b32 s{sT}, s35, 12
s_add_u32 s42, s42, s{sT}
s_add_u32 s42, s42, {KVP}
s_lshl_b32 s43, s36, 10
s_lshl_b32 s{sT}, s33, 7
s_add_u32 s43, s43, s{sT}
s_add_u32 s43, s43, {F_PART}
s_cmp_eq_u32 s32, {NG-1}
s_cbranch_scc1 P1_fin
s_lshl_b32 s{sT}, s32, 17
s_add_u32 s41, s42, s{sT}""")
    for i in range(4): e(f"buffer_store_dwordx4 {v(KV+4*i,4)}, v1, {s(WS,4)}, s41 offen offset:{1024*i} sc1")
    e(f"s_lshl_b32 s{sT}, s32, 2\ns_add_u32 s41, s43, s{sT}"); signal(e, "s41", 50)
    e("s_cmp_eq_u32 s34, 1\ns_cbranch_scc1 P3\ns_branch P1_next")
    e.lab("P1_fin")
    e(f"""s_cmp_eq_u32 s36, 0
s_cselect_b32 s40, 0, {G0}
v_max_u32 v50, s40, v0
v_min_u32 v50, {NG-2}, v50
v_lshlrev_b32 v50, 2, v50"""); wait_flags(e, 50, "s43", 51)
    e.lab("P1_red")
    NB = 5
    for j in range(NB):
        e(f"s_add_u32 s{sT2}, s40, {j}\ns_lshl_b32 s{sT}, s{sT2}, 17\ns_add_u32 s41, s42, s{sT}\ns_cmp_lt_u32 s{sT2}, {NG-1}\ns_cselect_b32 s{sT}, 0, 0x40000000\nv_or_b32 v50, s{sT}, v1")
        for i in range(4): e(f"buffer_load_dwordx4 {v(128+16*j+4*i,4)}, v50, {s(WS,4)}, s41 offen offset:{1024*i} sc1")
    for j in range(NB):
        e(f"s_waitcnt vmcnt({4*(NB-1-j)})")
        for i in range(16): e(f"v_add_f32 v{KV+i}, v{KV+i}, v{128+16*j+i}")
    e(f"s_add_u32 s40, s40, {NB}\ns_cmp_lt_u32 s40, {NG-1}\ns_cbranch_scc1 P1_red")
    for f in range(2):
        cvt(e, 52 + 4 * f, KV + 8 * f, KV + 8 * f + 1); cvt(e, 53 + 4 * f, KV + 8 * f + 2, KV + 8 * f + 3); cvt(e, 54 + 4 * f, KV + 8 * f + 4, KV + 8 * f + 5)
        e(f"v_cndmask_b32 v{54+4*f}, 0, v{54+4*f}, s[50:51]\nv_mov_b32 v{55+4*f}, 0")
    e(f"""v_and_b32 v50, 3, v0
v_lshlrev_b32 v50, 2, v50
s_mov_b32 s{sT}, 0xa98a
v_lshrrev_b32 v50, v50, s{sT}
v_and_b32 v50, 15, v50
v_and_b32 v51, 48, v0
v_add_lshl_u32 v50, v50, v51, 2
ds_bpermute_b32 v56, v50, v56
ds_bpermute_b32 v57, v50, v57
ds_bpermute_b32 v58, v50, v58
s_mul_i32 s41, s36, {KVF_L}
s_lshl_b32 s{sT}, s35, 11
s_add_u32 s41, s41, s{sT}
s_add_u32 s41, s41, {KVF}
buffer_store_dwordx4 v[52:55], v1, {s(WS,4)}, s41 offen sc1
s_waitcnt lgkmcnt(0)
buffer_store_dwordx4 v[56:59], v1, {s(WS,4)}, s41 offen offset:1024 sc1
s_lshl_b32 s41, s36, 7
s_lshl_b32 s{sT}, s33, 2
s_add_u32 s41, s41, s{sT}
s_add_u32 s41, s41, {F_FIN}"""); signal(e, "s41", 50)
    e.lab("P1_next")
    stamp(e, "s36", cfg['stamp'] and 0)
    e(f"""s_cmp_eq_u32 s36, {cfg['layers']-1}
s_cbranch_scc1 END
s_mov_b32 s36, 1
s_sub_u32 s37, s32, {G0}
s_add_u32 s37, s37, {64 % N3}
s_cmp_ge_u32 s37, {N3}
s_cselect_b32 s{sT}, {N3}, 0
s_sub_u32 s37, s37, s{sT}
s_mov_b32 s38, {N3}
s_branch P1_layer""")

def units48(e, va, nks, W2, soff):
    return [([(va(ks) + d, soff(ks), WT) for d in range(3)],
             [(W2(ks, t, hi), 61, t * 32 + hi * 384) for t in range(3) for hi in range(2)]) for ks in range(nks)]
def addr48(e, dst, rowfn, scol):
    for d in range(3):
        e(f"v_add_u32 v50, {64*d}, v0"); divmod_v(e, 51, 52, 50, 6)
        e("v_lshrrev_b32 v53, 3, v51\nv_and_b32 v54, 7, v51"); rowfn()
        e(f"v_mul_u32_u24 v51, 1152, v51\nv_lshl_add_u32 v51, v52, 4, v51\nv_add_u32 v{dst+d}, {scol}, v51")
def role_p2(e, cfg):
    NG = cfg['ng2']
    W = lambda ks, t: a_((ks * 3 + t) * 4, 4)
    W2 = lambda ks, t, hi: a_((ks * 3 + t) * 4 + 2 * hi, 2)
    e.lab("P2")
    srd(e, WT, 16, 576 * 1152); srd(e, XS, 0, 2048 * 1152)
    e("s_cmp_lg_u32 s2, 255\ns_cbranch_scc1 P2_noinit")
    e(f"v_mov_b32 v8, 0\nv_mov_b32 v9, 0\nv_mov_b32 v10, 0\nv_mov_b32 v11, 0\ns_lshl_b32 s41, s{sW}, 10")
    for i in range(F_END // 4096): e(f"buffer_store_dwordx4 v[8:11], v1, {s(WS,4)}, s41 offen sc1\ns_add_u32 s41, s41, 4096")
    e("s_mov_b32 s41, 128"); signal(e, "s41", 50, DB)
    e.lab("P2_noinit")
    e(f"s_mul_i32 s{sLds}, s{sW}, 40960\ns_mul_i32 s35, s33, 384\ns_mul_i32 s{sT}, s{sW}, 96\ns_add_u32 s35, s35, s{sT}")
    addr48(e, 56, lambda: e("v_lshrrev_b32 v51, 2, v54\nv_mul_u32_u24 v51, 18, v51\nv_lshl_add_u32 v51, v53, 2, v51\nv_and_b32 v54, 3, v54\nv_add_u32 v51, v51, v54"), "s35")
    addr48(e, 64, lambda: e("v_lshrrev_b32 v51, 1, v54\nv_lshl_add_u32 v51, v53, 2, v51\nv_mul_u32_u24 v51, 18, v51\nv_and_b32 v54, 1, v54\nv_add3_u32 v51, v51, v54, 16"), "s35")
    tr_addr(e, 61, 96, 50, 0)
    load_units(e, units48(e, lambda ks: 56 if ks < 16 else 64, 18, W2, lambda ks: (36 * ks if ks < 16 else 288 * (ks - 16)) * 1152), 18432)
    e("v_mov_b32 v4, 128"); wait_flags(e, 4, 0, 5, DB)
    KF, PB, XR, L, AC = 8, 72, 136, 148, 168
    e(f"""v_and_b32 v50, 15, v0
v_lshrrev_b32 v51, 4, v0
v_mul_u32_u24 v2, 1152, v50
v_lshl_add_u32 v2, v51, 3, v2
v_add_u32 v2, s35, v2
v_add_u32 v3, 18432, v2
v_mul_u32_u24 v5, 12, v0
v_and_b32 v51, 1, v51
v_cmp_eq_u32 s[44:45], 1, v51
v_min_u32 v4, 7, v0
v_lshlrev_b32 v4, 2, v4
s_and_b32 s{sT}, s{sW}, 1
s_cselect_b32 s46, 0, -1
s_cselect_b32 s47, -1, 0
s_lshl_b32 s{sT}, s{sW}, 12
v_add_u32 v6, s{sT}, v1
s_lshr_b32 s{sT}, s{sW}, 1
s_lshl_b32 s{sT}, s{sT}, 10
v_add_u32 v208, s{sT}, v1
s_mov_b32 s36, 0
s_barrier""")
    for i in range(16): e(f"v_mov_b32 v{PB+4*i+3}, 0")
    e.lab("P2_layer")
    e(f"s_lshl_b32 s41, s36, 7\ns_add_u32 s41, s41, {F_FIN}"); wait_flags(e, 4, "s41", 200)
    e(f"s_mul_i32 s41, s36, {KVF_L}\ns_lshl_b32 s{sT}, s{sW}, 14\ns_add_u32 s41, s41, s{sT}\ns_add_u32 s41, s41, {KVF}")
    for i in range(16):
        e(f"buffer_load_dwordx4 {v(KF+4*i,4)}, v1, {s(WS,4)}, s41 offen offset:{1024*(i%4)} sc1")
        if i % 4 == 3: e("s_add_u32 s41, s41, 4096")
    e("s_mov_b32 s37, s32")
    e.lab("P2_seg")
    e(f"""s_lshl_b32 s41, s37, 2
s_add_u32 s41, s41, s{sW}
s_mul_i32 s41, s41, 12288
s_mul_i32 s{sT}, s36, {PQ_L}
s_add_u32 s41, s41, s{sT}
s_add_u32 s41, s41, {PQ}""")
    for i in range(16):
        e(f"buffer_load_dwordx3 {v(PB+4*i,3)}, v5, {s(WS,4)}, s41 offen offset:{768*(i%4)} sc1")
        if i % 4 == 3: e("s_add_u32 s41, s41, 3072")
    e("s_mul_i32 s42, s37, 36864\ns_cmp_eq_u32 s36, 0\ns_cbranch_scc0 P2_x2")
    for i in range(6): e(f"buffer_load_dwordx2 {v(XR+2*i,2)}, v{2+i//3}, {s(XS,4)}, s42 offen offset:{32*(i%3)}")
    e(f"s_branch P2_xd\nP2_x2:\ns_add_u32 s41, s42, {X2}")
    for i in range(6): e(f"buffer_load_dwordx2 {v(XR+2*i,2)}, v{2+i//3}, {s(WS,4)}, s41 offen offset:{32*(i%3)} sc1")
    e.lab("P2_xd")
    def mm(u):
        e(f"s_waitcnt vmcnt({6+15-u})")
        d = AC + 8 * (u % 3)
        mfma(e, v(d, 4), v(KF + 8 * (u // 2), 4), v(PB + 4 * u, 4), "0"); mfma(e, v(d + 4, 4), v(KF + 8 * (u // 2) + 4, 4), v(PB + 4 * u, 4), "0")
    mm(0); mm(1)
    for u in range(16):
        if u + 2 < 16: mm(u + 2)
        d = AC + 8 * (u % 3); hh, mt = u // 2, u % 2; o = 192 + 4 * mt + 2 * (hh % 2)
        e(f"v_add_f32 v{d+4}, 0x358637bd, v{d+4}\nv_rcp_f32 v{d+4}, v{d+4}")
        for i in (0, 1, 2, 3, 5, 6): e(f"v_mul_f32 v{d+i}, v{d+i}, v{d+4}")
        cvt(e, o, d, d + 1); cvt(e, o + 1, d + 2, d + 3); cvt(e, L + 8 * mt + hh, d + 5, d + 6)
        if hh % 2: e(f"ds_write_b128 v6, {v(192+4*mt,4)} offset:{(mt*18+hh//2)*1024}")
    for mt in range(2):
        for i in range(4): e(f"v_cndmask_b32 v{200+4*mt+i}, v{L+8*mt+i}, v{L+8*mt+4+i}, s[44:45]")
    e(f"s_mov_b64 exec, s[46:47]\nds_write_b128 v208, v[200:203] offset:{16*1024}\nds_write_b128 v208, v[204:207] offset:{34*1024}\ns_mov_b64 exec, -1\ns_waitcnt lgkmcnt(0)\ns_barrier")
    def body(ks, x):
        for mt in range(2):
            for t in range(3): mfma(e, v(AC + 4 * (3 * mt + t), 4), W(ks, t), x[mt], "0" if ks == 0 else None)
    gemm_x(e, 1, 212, body)
    e(f"s_mul_i32 s{sT}, s36, {X1_L}\ns_add_u32 s41, s42, s{sT}\ns_add_u32 s41, s41, {X1}\ns_waitcnt vmcnt(0)")
    for i in range(6):
        resid_out(e, AC + 4 * i, XR + 2 * i, 192)
        e(f"buffer_store_dwordx2 {v(XR+2*i,2)}, v{2+i//3}, {s(WS,4)}, s41 offen offset:{32*(i%3)} sc1")
    e(f"""s_lshl_b32 s41, s36, 6
s_add_u32 s41, s41, s37
s_lshl_b32 s41, s41, 5
s_add_u32 s41, s41, s33
s_lshl_b32 s41, s41, 2
s_add_u32 s41, s41, {F_X1}"""); signal(e, "s41", 200)
    e(f"""s_add_u32 s37, s37, {NG}
s_cmp_lt_u32 s37, 64
s_cbranch_scc1 P2_seg
s_add_u32 s36, s36, 1
s_cmp_lt_u32 s36, {cfg['layers']}
s_cbranch_scc1 P2_layer
s_branch END""")
```

```python
from gen_common import *
from gen_a import addr48, units48
SC = "0x3e0293ee"
def unit32(va, so, sr, dstep, dst, vtr):
    return ([(va, so, sr), (va, so + dstep, sr)], [(dst(t, hi), vtr, t * 32 + hi * 256) for t in range(2) for hi in range(2) if dst(t, hi)])
def m16(e, d, a, b, c=None): e(f"v_mfma_f32_16x16x16_bf16 {d}, {a}, {b}, {d if c is None else c}")
def softmax(e, vals, m, t):
    e(f"v_max3_f32 v{m}, v{vals[0]}, v{vals[1]}, v{vals[2]}")
    r = vals[3:]
    while len(r) >= 2: e(f"v_max3_f32 v{m}, v{m}, v{r[0]}, v{r[1]}"); r = r[2:]
    if r: e(f"v_max_f32 v{m}, v{m}, v{r[0]}")
    xlane(e, "v_max_f32", m, t)
    e(f"v_mul_f32 v{m}, s30, v{m}")
    for x in vals: e(f"v_fma_f32 v{x}, v{x}, s30, -v{m}")
    for x in vals: e(f"v_exp_f32 v{x}, v{x}")
def role_p3(e, cfg):
    NS = cfg['ns3']
    W = lambda m, ks, t: wreg(((m * 18 + ks) * 2 + t) * 4, 80)
    e.lab("P3")
    e("s_barrier")
    srd(e, WT, 48, 576 * 8192); srd(e, XS, 56, 576 * 8192); srd(e, OUT, 40, 576 * 8192)
    e(f"""s_mul_i32 s{sLds}, s{sW}, 40960
s_lshl_b32 s{sT2}, s52, 8
s_lshl_b32 s{sT}, s{sW}, 6
s_add_u32 s{sT2}, s{sT2}, s{sT}
v_lshrrev_b32 v50, 2, v0
v_and_b32 v51, 3, v0
v_lshlrev_b32 v50, 13, v50
v_lshl_add_u32 v50, v51, 4, v50
v_add_u32 v56, s{sT2}, v50""")
    tr_addr(e, 61, 64, 50, 0)
    load_units(e, [unit32(56, ks * 32 * 8192, sr, 16 * 8192, lambda t, hi: wreg(((m * 18 + ks) * 2 + t) * 4 + 2 * hi, 80, 2), 61)
                   for m, sr in enumerate((WT, XS, OUT)) for ks in range(18)], 20480)
    ln_consts(e, 2, 3, 0, 4)
    e("v_and_b32 v50, 15, v0\nv_lshrrev_b32 v51, 4, v0\nv_lshlrev_b32 v51, 2, v51\nv_sub_u32 v50, v50, v51")
    for i in range(4): e(f"v_cmp_le_i32 {s(44+2*i,2)}, {i}, v50")
    e(f"v_min_u32 v4, 2, v0\nv_lshlrev_b32 v4, 2, v4\nv_mov_b32 v5, 0\ns_mov_b32 s30, {SC}\ns_mov_b32 s36, 0\ns_barrier")
    stamp(e, 0, cfg['stamp'])
    e.lab("P3_layer")
    e(f"s_mov_b32 s37, s53\ns_mov_b32 s38, 36864\ns_mov_b32 s39, {36864+24576}")
    e.lab("P3_loop")
    e("s_cmp_ge_u32 s37, 64\ns_cbranch_scc1 P3_att")
    e(f"s_lshl_b32 s40, s36, 6\ns_add_u32 s40, s40, s37\ns_lshl_b32 s41, s40, 7\ns_add_u32 s41, s41, {F_X1}"); wait_flags(e, 4, "s41", 50)
    e(f"s_mul_i32 s41, s40, 36864\ns_add_u32 s41, s41, {X1}"); ln_load(e, 8, 2, WS, "s41")
    ln_math(e, 8, 44)
    e("s_barrier"); ln_write(e, 8, 3); e("s_waitcnt lgkmcnt(0)\ns_barrier")
    K, V = 8, 24
    def body(ks, x):
        c = "0" if ks == 0 else None
        for mt in range(2):
            for t in range(2):
                mfma(e, v(K + 8 * mt + 4 * t, 4), W(0, ks, t), x[mt], c); mfma(e, v(V + 8 * t + 4 * mt, 4), x[mt], W(1, ks, t), c)
    gemm_x(e, 1, 60, body)
    e(f"""s_lshl_b32 s40, s40, 5
s_add_u32 s40, s40, s52
s_lshl_b32 s41, s40, 14
s_add_u32 s41, s41, {KX}
s_lshl_b32 s{sT}, s{sW}, 10
s_add_u32 s41, s41, s{sT}
s_add_u32 s42, s41, 4096
s_add_u32 s43, s41, s{sT}
s_add_u32 s43, s43, 8192
s_add_u32 s{sT2}, s{sT}, s38
v_add_u32 v6, s{sT2}, v1
v_add_u32 v76, s{sT}, v6""")
    for mt in range(2):
        for i in range(4): cvt(e, 40 + 4 * mt + i, K + 8 * mt + i, K + 8 * mt + 4 + i)
        e(f"buffer_store_dwordx4 {v(40+4*mt,4)}, v1, {s(WS,4)}, s{41+mt} offen sc1\nds_write_b128 v6, {v(40+4*mt,4)} offset:{4096*mt}")
    for t in range(2):
        for i in range(4): cvt(e, 48 + 4 * t + i, V + 8 * t + 2 * i, V + 8 * t + 2 * i + 1)
        e(f"buffer_store_dwordx4 {v(48+4*t,4)}, v1, {s(WS,4)}, s43 offen offset:{1024*t} sc1\nds_write_b128 v76, {v(48+4*t,4)} offset:{16384+1024*t}")
    e(f"s_lshl_b32 s41, s40, 2\ns_waitcnt lgkmcnt(0)")
    def bodyq(ks, x):
        if ks == 9: signal(e, "s41", 56)
        for mt in range(2):
            for t in range(2): mfma(e, v(K + 8 * mt + 4 * t, 4), W(2, ks, t), x[mt], "0" if ks == 0 else None)
    gemm_x(e, 1, 60, bodyq)
    for mt in range(2):
        for i in range(4): cvt(e, 40 + 4 * mt + i, K + 8 * mt + i, K + 8 * mt + 4 + i)
        e(f"ds_write_b128 v6, {v(40+4*mt,4)} offset:{8192+4096*mt}")
    e("s_waitcnt lgkmcnt(0)")
    e.lab("P3_att")
    e(f"s_cmp_lt_u32 s37, {NS}\ns_cbranch_scc1 P3_next\ns_barrier\nv_add_u32 v6, s39, v1\ns_lshl_b32 s{sT}, s{sW}, 11\nv_add_u32 v76, s{sT}, v6")
    Q, S = 8, 56
    for i in range(8): e(f"ds_read_b128 {v(Q+4*i,4)}, v6 offset:{8192+1024*i}")
    for kt in range(2):
        for ks in range(4): e(f"ds_read_b128 {v(40+4*ks,4)}, v6 offset:{4096*kt+1024*ks}")
        e("s_waitcnt lgkmcnt(0)")
        for ks in range(4):
            c = "0" if ks == 0 else None
            if kt == 0: mfma(e, v(S, 4), v(40 + 4 * ks, 4), v(Q + 4 * ks, 4), c)
            mfma(e, v(S + 4 + 4 * kt, 4), v(40 + 4 * ks, 4), v(Q + 16 + 4 * ks, 4), c)
    e(f"""s_lshl_b32 s40, s36, 6
s_add_u32 s40, s40, s37
s_sub_u32 s40, s40, {NS}
s_lshl_b32 s43, s40, 5
s_add_u32 s43, s43, s52
s_lshl_b32 s41, s43, 2
s_add_u32 s41, s41, {F_M}"""); wait_flags(e, 5, "s41", 77, sleep=1)
    e(f"s_lshl_b32 s41, s43, 13\ns_add_u32 s41, s41, {KM}\ns_lshl_b32 s42, s{sW}, 10\ns_add_u32 s42, s42, s41\ns_add_u32 s42, s42, 4096")
    for ks in range(4): e(f"buffer_load_dwordx4 {v(40+4*ks,4)}, v1, {s(WS,4)}, s41 offen offset:{1024*ks} sc1")
    e(f"buffer_load_dwordx2 v[78:79], v1, {s(WS,4)}, s42 offen sc1\nv_mov_b32 v77, 0xff800000")
    for i in range(4): e(f"v_cndmask_b32 v{S+i}, v77, v{S+i}, {s(44+2*i,2)}\nv_cndmask_b32 v{S+8+i}, v77, v{S+8+i}, {s(44+2*i,2)}")
    for ks in range(4):
        e(f"s_waitcnt vmcnt({4-ks})")
        for mt in range(2): mfma(e, v(S + 12 + 4 * mt, 4), v(40 + 4 * ks, 4), v(Q + 16 * mt + 4 * ks, 4), "0" if ks == 0 else None)
    e("ds_read_b128 v[8:11], v76 offset:16384\nds_read_b128 v[12:15], v76 offset:17408")
    for i in range(4): e(f"v_mov_b32 v{16+i}, 0x3f803f80")
    for r in (22, 23, 29, 30, 33, 34): e(f"v_mov_b32 v{r}, 0")
    softmax(e, [S, S + 1, S + 2, S + 3, S + 12, S + 13], 36, 37)
    softmax(e, list(range(S + 4, S + 12)) + [S + 16, S + 17], 36, 37)
    cvt(e, 20, S, S + 1); cvt(e, 21, S + 2, S + 3)
    for i in range(4): cvt(e, 24 + i, S + 4 + 2 * i, S + 5 + 2 * i)
    for mt in range(2): cvt(e, 28 + 4 * mt, S + 12 + 4 * mt, S + 13 + 4 * mt); cvt(e, 31 + 4 * mt, S + 12 + 4 * mt, S + 13 + 4 * mt)
    e("s_waitcnt vmcnt(0) lgkmcnt(0)")
    for mt in range(2): m16(e, v(56 + 4 * mt, 4), v(16, 2), v(28 + 4 * mt, 2), "0")
    for mt in range(2):
        for t in range(2): m16(e, v(40 + 8 * mt + 4 * t, 4), v(78, 2), v(28 + 4 * mt + 2 * t, 2), "0")
    for mt in range(2): mfma(e, v(56 + 4 * mt, 4), v(16, 4), v(20 + 4 * mt, 4))
    for mt in range(2):
        for t in range(2): mfma(e, v(40 + 8 * mt + 4 * t, 4), v(8 + 4 * t, 4), v(20 + 4 * mt, 4))
    e(f"""v_rcp_f32 v56, v56
v_rcp_f32 v60, v60
s_lshl_b32 s41, s40, 6
s_add_u32 s41, s41, s52
s_lshl_b32 s41, s41, 2
s_add_u32 s41, s41, s{sW}
s_lshl_b32 s41, s41, 10
s_add_u32 s41, s41, {OB}
s_add_u32 s42, s41, 0x20000""")
    for mt in range(2):
        for i in range(8): e(f"v_mul_f32 v{40+8*mt+i}, v{40+8*mt+i}, v{56+4*mt}")
        for i in range(4): cvt(e, 64 + 4 * mt + i, 40 + 8 * mt + 2 * i, 41 + 8 * mt + 2 * i)
        e(f"buffer_store_dwordx4 {v(64+4*mt,4)}, v1, {s(WS,4)}, s{41+mt} offen sc1")
    e(f"s_lshl_b32 s41, s43, 2\ns_add_u32 s41, s41, {F_O}"); signal(e, "s41", 77)
    e.lab("P3_next")
    e(f"""s_mov_b32 s{sT}, s38
s_mov_b32 s38, s39
s_mov_b32 s39, s{sT}
s_add_u32 s37, s37, {NS}
s_cmp_lt_u32 s37, {64+NS}
s_cbranch_scc1 P3_loop
s_add_u32 s36, s36, 1
s_cmp_lt_u32 s36, {cfg['layers']}
s_cbranch_scc1 P3_layer
s_branch END""")

def role_p4(e, cfg):
    NG = cfg['ng4']
    W = lambda ks, t: wreg((ks * 3 + t) * 4, 128)
    W2 = lambda ks, t, hi: wreg((ks * 3 + t) * 4 + 2 * hi, 128, 2)
    e.lab("P4")
    srd(e, WT, 64, 4096 * 1152); srd(e, OUT, 80, 2048 * 1152)
    e(f"s_mul_i32 s{sLds}, s{sW}, 40960\ns_mul_i32 s35, s33, 96\ns_mul_i32 s{sT}, s{sW}, {1024*1152}\ns_add_u32 s40, s35, s{sT}")
    addr48(e, 56, lambda: e("v_lshrrev_b32 v51, 2, v54\nv_lshlrev_b32 v51, 4, v51\nv_lshl_add_u32 v51, v53, 2, v51\nv_and_b32 v54, 3, v54\nv_add_u32 v51, v51, v54"), "s40")
    tr_addr(e, 61, 96, 50, 0)
    load_units(e, units48(e, lambda ks: 56, 32, W2, lambda ks: 32 * ks * 1152), 18432)
    e("v_mov_b32 v4, 128"); wait_flags(e, 4, 0, 5, DB)
    e(f"""v_and_b32 v50, 15, v0
v_lshrrev_b32 v51, 4, v0
v_mul_u32_u24 v2, 1152, v50
v_lshl_add_u32 v2, v51, 3, v2
s_min_u32 s{sT}, s{sW}, 2
s_lshl_b32 s{sT2}, s{sT}, 5
s_add_u32 s35, s35, s{sT2}
v_add_u32 v2, s35, v2
s_lshl_b32 s{sT}, s{sT}, 10
v_add_u32 v5, s{sT}, v1
s_mul_i32 s{sT}, s{sW}, 3072
v_add_u32 v3, s{sT}, v1
v_and_b32 v4, 7, v0
s_lshl_b32 s{sT}, s{sW}, 3
v_add_lshl_u32 v4, v4, s{sT}, 2
s_mov_b32 s36, 0
s_barrier""")
    NF = 24; AC = 104
    e.lab("P4_layer"); e("s_mov_b32 s37, s32"); e.lab("P4_unit")
    e(f"s_lshl_b32 s40, s36, 7\ns_add_u32 s40, s40, s37\ns_lshr_b32 s41, s40, 1\ns_lshl_b32 s41, s41, 7\ns_add_u32 s41, s41, {F_O}"); wait_flags(e, 4, "s41", 8, sleep=1)
    e(f"""s_mul_i32 s42, s40, 18432
s_add_u32 s42, s42, {X1}
buffer_load_dwordx2 v[116:117], v2, {s(WS,4)}, s42 offen sc1
s_lshl_b32 s41, s40, 2
s_add_u32 s41, s41, s{sW}
s_lshl_b32 s41, s41, 15
s_add_u32 s41, s41, {OB}""")
    def ld(ks):
        e(f"buffer_load_dwordx4 {v(8+4*(ks%NF),4)}, v1, {s(WS,4)}, s41 offen offset:{1024*(ks%4)} sc1")
        if ks % 4 == 3: e("s_add_u32 s41, s41, 4096")
    for ks in range(NF): ld(ks)
    for ks in range(32):
        e(f"s_waitcnt vmcnt({min(NF-1, 31-ks)})")
        for t in range(3): mfma(e, v(AC + 4 * t, 4), W(ks, t), v(8 + 4 * (ks % NF), 4), "0" if ks == 0 else None)
        if ks + NF < 32: ld(ks + NF)
    for t in range(3): e(f"ds_write_b128 v3, {v(AC+4*t,4)} offset:{1024*t}")
    e("s_waitcnt lgkmcnt(0)\ns_barrier")
    for w in range(4): e(f"ds_read_b128 {v(8+4*w,4)}, v5 offset:{3072*w}")
    e("s_waitcnt lgkmcnt(0)")
    for i in range(4): e(f"v_add_f32 v{8+i}, v{8+i}, v{12+i}\nv_add_f32 v{16+i}, v{16+i}, v{20+i}")
    for i in range(4): e(f"v_add_f32 v{8+i}, v{8+i}, v{16+i}")
    resid_out(e, 8, 116, 24)
    e(f"""s_mul_i32 s42, s37, 18432
s_cmp_eq_u32 s36, {cfg['layers']-1}
s_cbranch_scc1 P4_out
s_add_u32 s42, s42, {X2}
s_cmp_eq_u32 s{sW}, 3
s_cbranch_scc1 P4_s1
buffer_store_dwordx2 v[116:117], v2, {s(WS,4)}, s42 offen sc1
P4_s1:
s_lshr_b32 s41, s37, 1
s_lshl_b32 s41, s41, 5
s_and_b32 s{sT}, s37, 1
s_mul_i32 s{sT}, s{sT}, 12
s_add_u32 s41, s41, s{sT}
s_add_u32 s41, s41, s33
s_lshl_b32 s41, s41, 2
s_add_u32 s41, s41, {F_X2}"""); signal(e, "s41", 8)
    e(f"""s_branch P4_next
P4_out:
s_cmp_eq_u32 s{sW}, 3
s_cbranch_scc1 P4_s2
buffer_store_dwordx2 v[116:117], v2, {s(OUT,4)}, s42 offen
P4_s2:
s_barrier
P4_next:
s_add_u32 s37, s37, {NG}
s_cmp_lt_u32 s37, 128
s_cbranch_scc1 P4_unit
s_add_u32 s36, s36, 1
s_cmp_lt_u32 s36, {cfg['layers']}
s_cbranch_scc1 P4_layer""")
    stamp(e, 4, cfg['stamp'])
    e("s_branch END")
```

```python
from gen_common import *
from gen_b import unit32, m16, SC
LPAIR = [('Q',0),('Q',2),('Q',4),('Q',6),('K',7)]
LOP = {}
for i, (m, t) in enumerate(LPAIR): LOP[(m,t,0)] = 2*i; LOP[(m,t,1)] = 2*i+1
for i, (t, t2) in enumerate([(0,0),(0,1),(6,0),(6,1)]): LOP[('O',t,t2)] = 10+2*i; LOP[('O',t+1,t2)] = 11+2*i
ROP = {}
for m in 'QKVO':
    for t in range(9):
        for x in range(2):
            if (m,t,x) not in LOP: ROP[(m,t,x)] = len(ROP)
assert len(ROP) == 54
vL, vI, vP, vM, vX, vO, vW = 1, 0, 2, 3, 4, 5, 6
A0, QA, KA, SA, SB = 8, 44, 52, 60, 68
class Lg:
    def __init__(s_, e): s_.e = e; s_.q = []
    def op(s_, txt, tag): s_.e(txt); s_.q.append(tag)
    def wait(s_, *tags):
        idx = [i for i, t in enumerate(s_.q) if t in tags]
        if not idx: return
        n = len(s_.q) - 1 - max(idx); s_.e(f"s_waitcnt lgkmcnt({n})"); s_.q = s_.q[max(idx)+1:]
    def all(s_): s_.e("s_waitcnt lgkmcnt(0)"); s_.q = []
def chain_setup(e, cfg):
    e.lab("CH")
    e(f"""s_setprio 3
s_getreg_b32 s54, hwreg(HW_REG_XCC_ID, 0, 4)
s_add_u32 s54, s54, 1
s_mul_i32 s{sLds}, s{sW}, 36864
s_add_u32 s{sLds}, s{sLds}, 16384
v_add_u32 v{vW}, s{sLds}, v1
s_lshl_b32 s{sT}, s{sW}, 3
v_lshrrev_b32 v50, 3, v0
v_add_u32 v50, s{sT}, v50
v_mul_u32_u24 v50, 96, v50
v_add_lshl_u32 v50, v50, s52, 7
v_and_b32 v51, 7, v0
v_lshl_add_u32 v{vP}, v51, 4, v50
s_mul_i32 s59, s52, 3
s_add_u32 s59, s59, s{sW}
s_lshl_b32 s59, s59, 12
s_add_u32 s59, s59, {PART}
s_mov_b32 s60, {PART}
s_mov_b32 s61, {PART+4096}
s_mov_b32 s62, {PART+8192}
v_and_b32 v50, 15, v0
v_cmp_gt_u32 s[46:47], 6, v50
v_lshrrev_b32 v51, 1, v50
s_mul_i32 s63, s{sW}, 3072
v_lshl_add_u32 v{vM}, v51, 10, s63
v_and_b32 v51, 1, v0
v_lshl_add_u32 v{vM}, v51, 5, v{vM}
s_lshr_b32 s{sT}, s52, 1
s_lshl_b32 s{sT}, s{sT}, 6
s_and_b32 s{sT2}, s52, 1
s_lshl_b32 s{sT2}, s{sT2}, 4
s_add_u32 s{sT}, s{sT}, s{sT2}
v_add_u32 v{vM}, s{sT}, v{vM}
v_bfe_u32 v51, v0, 4, 1
v_lshl_add_u32 v{vM}, v51, 3, v{vM}
v_lshrrev_b32 v51, 5, v0
v_lshl_add_u32 v{vM}, v51, 2, v{vM}
s_mov_b32 s56, {RING}
s_mov_b32 s57, {RING+9216}
s_mov_b32 s58, {RING+18432}
v_mov_b64 v[8:9], 0
v_mov_b64 v[10:11], 0
v_mov_b32 v12, -1""")
    for u in range(3): e(f"buffer_store_dwordx4 v[8:11], v{vP}, {s(WS,4)}, s{60+u} offen sc1")
    e(f"s_cmp_eq_u32 s{sW}, 3\ns_cbranch_scc1 CH_np\ns_mov_b64 exec, s[46:47]")
    for u in range(3): e(f"buffer_store_dword v12, v{vM}, {s(WS,4)}, s{56+u} offen sc1")
    e("s_mov_b64 exec, -1\nCH_np:\ns_lshl_b32 s41, s52, 2"); signal(e, "s41", 50, DB, "s54")
    srd(e, WT, 40, 576*8192); srd(e, XS, 48, 576*8192); srd(e, OUT, 56, 576*8192); srd(e, 64, 64, 4096*1152); srd(e, 32, 32, 9216)
    e(f"""v_lshrrev_b32 v50, 4, v0
v_bfe_u32 v51, v0, 3, 1
v_bfe_u32 v52, v0, 2, 1
v_and_b32 v53, 3, v0
v_lshl_add_u32 v54, v50, 1, v52
v_lshl_add_u32 v54, v51, 3, v54
v_lshlrev_b32 v54, 13, v54
v_lshl_add_u32 v54, v53, 4, v54
s_lshl_b32 s{sT2}, s52, 8
s_lshl_b32 s{sT}, s{sW}, 6
s_add_u32 s{sT2}, s{sT2}, s{sT}
v_add_u32 v76, s{sT2}, v54
v_lshrrev_b32 v54, 1, v50
v_lshlrev_b32 v54, 4, v54
v_lshl_add_u32 v54, v51, 2, v54
v_and_b32 v50, 1, v50
v_lshl_add_u32 v54, v50, 1, v54
v_add_u32 v54, v54, v52
v_mul_u32_u24 v54, 1152, v54
v_and_b32 v50, 1, v53
v_lshl_add_u32 v54, v50, 4, v54
s_mul_i32 s{sT2}, s52, {128*1152}
s_lshl_b32 s{sT}, s{sW}, 5
s_add_u32 s{sT2}, s{sT2}, s{sT}
v_add_u32 v78, s{sT2}, v54
v_lshrrev_b32 v50, 1, v53
v_lshl_add_u32 v77, v50, 7, v78""")
    tr_addr(e, 79, 64, 50, 0)
    def unit(m, t, h, dst):
        if m == 'O': return unit32(77 if t < 8 else 78, h*32*1152 + t*128, 64, 8*1152, dst, 79)
        return unit32(76, (2*t+h)*32*8192, {'Q': WT, 'K': XS, 'V': OUT}[m], 16*8192, dst, 79)
    us = []
    for m in 'QKV':
        for t in range(9):
            if (m,t,0) in ROP:
                for h in range(2): us.append(unit(m, t, h, lambda tn, hi: wreg(ROP[(m,t,tn)]*8 + 4*h + 2*hi, 80, 2)))
    for t in range(0, 9, 2):
        for h in range(4):
            if ('O',t,h//2) in ROP: us.append(unit('O', t, h, lambda tn, hi: wreg(ROP[('O',t+tn,h//2)]*8 + 4*(h%2) + 2*hi, 80, 2) if t+tn < 9 else None))
    load_units(e, us, 18432)
    lp = [[unit(m, t, h, lambda tn, hi: v(8 + 8*tn + 4*h + 2*hi, 2)) for h in range(2)] for m, t in LPAIR]
    lp += [[unit('O', t, 2*t2+h, lambda tn, hi: v(8 + 8*tn + 4*h + 2*hi, 2)) for h in range(2)] for t, t2 in [(0,0),(0,1),(6,0),(6,1)]]
    for p, pr in enumerate(lp):
        for h in range(2):
            for i, (va, so, sr) in enumerate(pr[h][0]):
                e(f"s_add_u32 m0, s{sLds}, {p*4096+h*2048+i*1024}\ns_mov_b32 s{sT}, {so}\nbuffer_load_dwordx4 v{va}, {s(sr,4)}, s{sT} offen lds")
    for p, pr in enumerate(lp):
        e(f"s_waitcnt vmcnt({4*(8-p)})")
        for h in range(2):
            for dst, va, imm in pr[h][1]: e(f"ds_read_b64_tr_b16 {dst}, v{va} offset:{p*4096+h*2048+imm}")
        e("s_waitcnt lgkmcnt(0)")
        for i in range(4): e(f"ds_write_b128 v{vW}, {v(8+4*i,4)} offset:{p*4096+i*1024}")
        e("s_waitcnt lgkmcnt(0)")
    e("v_and_b32 v50, 15, v0\nv_mov_b32 v51, 0x3f80\nv_mov_b32 v52, 0x3f800000\nv_mov_b32 v11, 0")
    for j in range(3): e(f"v_cmp_eq_u32 vcc, {2*j}, v50\nv_cndmask_b32 v{8+j}, 0, v51, vcc\nv_cmp_eq_u32 vcc, {2*j+1}, v50\nv_cndmask_b32 v{8+j}, v{8+j}, v52, vcc")
    e(f"""ds_write_b128 v1, v[8:11] offset:7168
v_lshrrev_b32 v51, 2, v50
v_lshrrev_b32 v52, 4, v0
v_and_b32 v53, 3, v0
v_lshlrev_b32 v{vX}, 8, v51
v_lshl_add_u32 v{vX}, v52, 6, v{vX}
v_lshl_add_u32 v{vX}, v53, 2, v{vX}
s_lshl_b32 s{sT}, s{sW}, 10
s_add_u32 s{sT}, s{sT}, 3072
v_add_u32 v{vX}, s{sT}, v{vX}
v_cmp_le_u32 s[44:45], 2, v53
v_and_b32 v53, 1, v0
v_lshl_add_u32 v51, v51, 1, v53
v_lshlrev_b32 v51, 5, v51
v_and_b32 v54, 1, v52
v_lshl_add_u32 v51, v54, 4, v51
v_lshrrev_b32 v54, 1, v52
v_lshl_add_u32 v51, v54, 8, v51
s_lshl_b32 s{sT}, s{sW}, 9
v_add_u32 v{vO}, s{sT}, v51
v_mov_b32 v55, 128"""); wait_flags(e, 55, 0, 56, DB)
    e("v_and_b32 v55, 31, v0\nv_lshlrev_b32 v55, 2, v55"); wait_flags(e, 55, 0, 56, DB)
    e(f"""v_cmp_ne_u32 vcc, s54, v56
v_mov_b32 v51, 0x4444
v_mov_b32 v52, 0xeeee
v_cmp_eq_u32 s[48:49], 1, v53
s_mov_b32 s30, {SC}
s_mov_b32 s31, 1
s_mov_b32 s36, 0
v_cndmask_b32 v{vI}, v51, v52, s[48:49]
s_waitcnt lgkmcnt(0)
s_barrier""")
    stamp(e, 0, cfg['stamp'])
    e("s_cbranch_vccnz CH_far")
    for md in "nf":
        if md == 'f': e.lab("CH_far")
        for w in range(3): e(f"s_cmp_eq_u32 s{sW}, {w}\ns_cbranch_scc1 CH{md}{w}_layer")
        e(f"s_branch CH{md}3_layer")

def chain_wave(e, cfg, md, w):
    N = f"CH{md}{w}"; st = "sc1" if md == 'f' else ""
    lg = Lg(e)
    def wop(k): return wreg(ROP[k]*8, 80, 8)
    def sm(d, a, b): e(f"v_smfmac_f32_16x16x64_bf16 {v(d,4)}, {v(a,4)}, {b}, v{vI}")
    def rdw(k, dst):
        for h in range(2): lg.op(f"ds_read_b128 {v(dst+4*h,4)}, v{vW} offset:{LOP[k]*2048+h*1024}", k)
    def rd(dst, off, tag): lg.op(f"ds_read_b128 {v(dst,4)}, v{vL} offset:{off}", tag)
    def zero(r0, n):
        for i in range(0, n, 2): e(f"v_mov_b64 {v(r0+i,2)}, 0")
    def gload():
        e(f"s_add_u32 s40, s56, s63")
        for i in range(3): e(f"buffer_load_dwordx4 {v(A0+12*w+4*i,4)}, v{vL}, {s(WS,4)}, s40 offen offset:{1024*i} sc1")
    def gcheck(fill=()):
        l, d = e.uid("gc"), e.uid("gd"); b = A0 + 12*w
        e(f"s_mov_b32 s29, 0\n{l}:\ns_waitcnt vmcnt(0)\nv_max3_u32 v76, v{b}, v{b+1}, v{b+2}\nv_max3_u32 v77, v{b+3}, v{b+4}, v{b+5}")
        e(f"v_max3_u32 v76, v76, v{b+6}, v{b+7}\nv_max3_u32 v77, v77, v{b+8}, v{b+9}\nv_max3_u32 v76, v76, v{b+10}, v{b+11}\nv_max_u32 v76, v76, v77\nv_cmp_eq_u32 vcc, -1, v76")
        e(f"s_cbranch_vccz {d}\ns_add_u32 s29, s29, 1\ns_add_u32 s90, s90, 1"); gload()
        e(f"s_cmp_lt_u32 s29, s{sDead}\ns_cbranch_scc1 {l}\ns_mov_b32 s{sDead}, 0\ns_waitcnt vmcnt(0)\n{d}:")
        for i in range(3): lg.op(f"ds_write_b128 v{vL}, {v(b+4*i,4)} offset:{(w%2)*3072+1024*i}", 'gw')
    def kxload():
        e(f"s_lshl_b32 s41, s43, 14\ns_add_u32 s41, s41, {KX}")
        for i in range(8):
            if i == 4: e("s_add_u32 s41, s41, 4096")
            if i % 4 == 0: e(f"s_mov_b32 m0, {8192+1024*i}")
            e(f"buffer_load_dwordx4 v{vL}, {s(WS,4)}, s41 offen offset:{1024*(i%4)} sc1 lds")
        e(f"s_add_u32 s41, s41, 4096\nv_lshlrev_b32 v{vM}, 3, v{vL}\nbuffer_load_dword v{vM}, v{vM}, {s(WS,4)}, s41 offen sc1")
    def prep():
        zero(QA, 16); rdw(('Q',0,0), SA); rdw(('Q',0,1), SB)
    def tick(i):
        if cfg['stamp'] and w == cfg.get('tw', 0) and i in cfg.get('ticks', ()): e(f"s_memtime {s(70+2*i,2)}")
    e.lab(N + "_layer")
    e("s_mov_b32 s37, 0\ns_lshl_b32 s43, s36, 11\ns_add_u32 s43, s43, s52")
    if w < 3:
        e(f"v_bfe_u32 v76, v{vL}, 5, 3\nv_mul_u32_u24 v76, 1152, v76\nv_and_b32 v77, 16, v{vL}\nv_add_u32 v76, v76, v77\nv_lshrrev_b32 v77, 8, v{vL}\nv_lshl_add_u32 v76, v77, 5, v76")
        for i in range(3): e(f"buffer_load_dwordx4 {v(A0+12*w+4*i,4)}, v76, s[32:35], 0 offen offset:{128*(3*w+i)}")
    else:
        e("s_lshl_b32 s41, s43, 2\nv_mov_b32 v76, 0"); wait_flags(e, 76, "s41", 77, sleep=1); kxload()
    prep()
    e.lab(N + "_step")
    tick(0)
    if w == 0: gcheck(); lg.all()
    e("s_barrier")
    tick(1)
    if w != 0:
        for i in range(3): rd(A0+4*i, 1024*i, f"A{i}")
    if w == 2: e(f"s_cmp_eq_u32 s37, 0\ns_cbranch_scc1 {N}_ng"); gload(); e.lab(N + "_ng")
    seq = [(m, t) for t in range(6) for m in 'QK'] + [('Q',6),('Q',7),('Q',8),('K',6),('K',7),('K',8)]
    for p, (m, t) in enumerate(seq):
        lds = (m,t,0) in LOP; acc = QA if m == 'Q' else KA
        lg.wait(f"A{t}", (m,t,0))
        sm(acc, A0+4*t, v(SA,8) if lds else wop((m,t,0)))
        if p == 16: zero(SA, 4)
        if p == 17: lg.op(f"ds_write2_b32 v{vX}, v78, v79 offset0:8 offset1:12", 'q')
        lg.wait((m,t,1))
        sm(acc+4, A0+4*t, v(SB,8) if lds else wop((m,t,1)))
        if lds and p < 16: rdw(seq[p+4] + (0,), SA); rdw(seq[p+4] + (1,), SB)
        for g in (1, 2):
            if p == 6*g - 5 and w == g: gcheck()
            if p == 6*g - 4:
                if g == 2 and w == 3:
                    e(f"s_waitcnt vmcnt(0)\ns_cmp_eq_u32 s37, 0\ns_cbranch_scc1 {N}_nf\ns_lshl_b32 s41, s43, 2\ns_add_u32 s41, s41, {F_M-128}")
                    signal(e, "s41", 76, barrier=False); e.lab(N + "_nf")
                lg.wait('gw', f"A{3*g-1}"); e("s_barrier")
                if w != g:
                    for i in range(3): rd(A0+12*g+4*i, (g%2)*3072+1024*i, f"A{3*g+i}")
        if p == 10 and w < 3: e(f"v_mov_b32 v76, -1\ns_mov_b64 exec, s[46:47]\nbuffer_store_dword v76, v{vM}, {s(WS,4)}, s58 offen {st}\ns_mov_b64 exec, -1")
        if p == 15: e(f"s_lshl_b32 s41, s43, 14\ns_add_u32 s41, s41, {KX+8192+2048*w}\ns_lshl_b32 s42, s43, 13\ns_add_u32 s42, s42, {KM+1024*w}\ns_add_u32 s39, s42, 4096")
        if p == 15:
            for i in range(4): e(f"v_add_f32 v{QA+2*i}, v{QA+2*i}, v{QA+2*i+1}")
        if p == 16:
            zero(SA+4, 4); cvt(e, 78, QA, QA+4); cvt(e, 79, QA+2, QA+6); rd(SB, 8192, 'x0'); rd(SB+4, 12288, 'x0')
    tick(2)
    def vs(t, f0=None, f1=None):
        sm(SA, A0+4*t, wop(('V',t,0))); f0 and f0(); sm(SA+4, A0+4*t, wop(('V',t,1))); f1 and f1()
    vs(0)
    vs(1, lambda: e("\n".join(f"v_add_f32 v{KA+2*i}, v{KA+2*i}, v{KA+2*i+1}" for i in range(4))),
       lambda: (cvt(e, 76, KA, KA+4), cvt(e, 77, KA+2, KA+6), lg.op(f"ds_write2_b32 v{vX}, v76, v77 offset0:0 offset1:4", 'k')))
    def vxl():
        for t in range(2): e(f"buffer_load_dwordx4 {v(8+4*t,4)}, v{vL}, {s(WS,4)}, s41 offen offset:{1024*t} sc1")
        if w == 3: e(f"s_lshl_b32 s41, s43, 2\ns_add_u32 s41, s41, 128\nbuffer_load_dword v{vM}, off, {s(WS,4)}, s41 sc1")
    vs(2, vxl)
    lg.all(); e("s_barrier")
    for i in range(4): rd(QA+4*i, 3072+1024*i, f"F{i}")
    vs(3, None, lambda: (rd(16, 8192+1024, 'x1'), rd(20, 12288+1024, 'x1')))
    vs(4); vs(5)
    F = lambda i: v(QA+4*i, 4)
    def sx(ks, b):
        lg.wait(f"x{ks}", f"F{ks}")
        for kt in range(2): mfma(e, v(24+4*kt,4), v(b+4*kt,4), F(ks), "0" if ks == 0 else None)
        if ks < 2: rd(b, 8192+1024*(ks+2), f"x{ks+2}"); rd(b+4, 12288+1024*(ks+2), f"x{ks+2}")
    sx(0, SB); sx(1, 16)
    e(f"buffer_store_dwordx4 {F(w)}, v{vL}, {s(WS,4)}, s42 offen sc1")
    for ks in range(4): mfma(e, v(76,4), F(ks), F(ks), "0" if ks == 0 else None)
    sx(2, SB); sx(3, 16)
    tick(3)
    vals = list(range(24, 32)) + [76, 77]
    vs(6, lambda: rdw(('O',0,0), 44), lambda: (rdw(('O',1,0), 52), e("v_mov_b32 v68, 0x3f803f80\nv_mov_b32 v69, v68\nv_max3_f32 v72, v76, v77, v24\nv_max3_f32 v72, v72, v25, v26")))
    vs(7, lambda: e("v_max3_f32 v72, v72, v27, v28\nv_max3_f32 v73, v29, v30, v31\nv_max_f32 v72, v72, v73\nv_max_f32 v73, v72, v73"),
       lambda: (rdw(('O',0,1), 32), e("v_permlane16_swap_b32 v72, v73\nv_max_f32 v72, v72, v73\nv_max_f32 v73, v72, v73")))
    vs(8, lambda: e("v_mov_b64 v[70:71], v[68:69]\nv_permlane32_swap_b32 v72, v73\nv_max_f32 v72, v72, v73"), lambda: e("v_mul_f32 v72, s30, v72\nv_mov_b32 v21, 0\nv_mov_b32 v22, 0"))
    for x in vals: e(f"v_fma_f32 v{x}, v{x}, s30, -v72")
    for i in range(4): e(f"v_add_f32 v{SA+2*i}, v{SA+2*i}, v{SA+2*i+1}")
    cvt(e, 78, SA, SA+2); cvt(e, 79, SA+4, SA+6)
    e(f"buffer_store_dwordx2 v[78:79], v{vL}, {s(WS,4)}, s39 offen sc1\ns_cmp_eq_u32 s37, 63\ns_cbranch_scc1 {N}_end")
    e("v_exp_f32 v76, v76\nv_exp_f32 v77, v77\nv_exp_f32 v24, v24"); cvt(e, 20, 76, 77); cvt(e, 23, 76, 77)
    e("v_exp_f32 v25, v25\nv_exp_f32 v26, v26"); m16(e, v(72,4), v(68,2), v(20,2), "0")
    e("v_exp_f32 v27, v27"); m16(e, v(SA,4), v(78,2), v(20,2), "0")
    e("v_exp_f32 v28, v28"); m16(e, v(SA+4,4), v(78,2), v(22,2), "0")
    e("v_exp_f32 v29, v29\nv_exp_f32 v30, v30\nv_exp_f32 v31, v31")
    for i in range(4): cvt(e, 16+i, 24+2*i, 25+2*i)
    e("s_waitcnt vmcnt(2)"); zero(24, 2)
    mfma(e, v(72,4), v(68,4), v(16,4)); zero(26, 4)
    mfma(e, v(SA,4), v(8,4), v(16,4)); zero(30, 2); zero(8, 2)
    mfma(e, v(SA+4,4), v(12,4), v(16,4)); zero(10, 4)
    e("v_rcp_f32 v72, v72"); zero(14, 2); e("v_mov_b32 v43, s31")
    for i in range(4): e(f"v_mul_f32 v{SA+i}, v{SA+i}, v72")
    cvt(e, 76, SA, SA+1); cvt(e, 77, SA+2, SA+3)
    for i in range(4, 8): e(f"v_mul_f32 v{SA+i}, v{SA+i}, v72")
    cvt(e, 78, SA+4, SA+5); cvt(e, 79, SA+6, SA+7)
    e("s_mov_b64 exec, s[44:45]"); lg.op(f"ds_write_b128 v{vO}, v[76:79]", 'o'); e("s_mov_b64 exec, -1")
    rdw(('O',1,1), 60); zero(16, 8)
    lg.wait('o'); e("s_barrier")
    tick(4)
    rd(68, 0, 'o0'); rd(72, 1024, 'o1'); e("v_mov_b32 v79, s31")
    buf = {(0,0): 44, (1,0): 52, (0,1): 32, (1,1): 60}
    def pack(u, part):
        ac = 8 + 12*(u%2); pk = 76 if u == 1 else 40; d = ac + 4*part
        e(f"v_add_f32 v{d}, v{d}, v{d+1}\nv_add_f32 v{d+2}, v{d+2}, v{d+3}"); cvt(e, pk+part, d, d+2)
        if part == 2: e(f"buffer_store_dwordx4 {v(pk,4)}, v{vP}, {s(WS,4)}, s{60+u} offen {st}")
    def pload():
        for i in range(4): e(f"buffer_load_dwordx4 {v(44+4*i,4)}, v{vL}, {s(WS,4)}, s59 offen offset:{1024*i} sc1")
    for p in range(18):
        u, t2, tt = p//6, (p%6)//3, p%3; k = ('O', 3*u+tt, t2)
        lg.wait(f"o{t2}", k)
        sm(8+12*(u%2)+4*tt, 68+4*t2, v(buf[(tt,t2)],8) if k in LOP else wop(k))
        if k in LOP and u == 0: rdw(('O', 6+tt, t2), buf[(tt,t2)])
        if u > 0 and 1 <= p%6 <= 3: pack(u-1, p%6-1)
        if u == 1 and p%6 >= 4: zero(8+6*(p%6-4), 6)
    if w < 3: rd(60, 7168, 'sel')
    early = w < cfg['early1']
    if early: pload()
    for part in range(3): pack(2, part)
    tick(5)
    e("s_add_u32 s43, s43, 32\ns_add_u32 s37, s37, 1")
    if w < 3:
        l, d = e.uid("pc"), e.uid("pd")
        if not early:
            if w >= cfg['wait1']: e("s_waitcnt vmcnt(0)")
            pload()
        lg.all()
        e(f"s_mov_b32 s29, 0\n{l}:\ns_waitcnt vmcnt({1 if early else 0})")
        mfma(e, v(64,4), v(44,4), v(60,4), "0"); e("v_min3_u32 v76, v47, v51, v55")
        mfma(e, v(64,4), v(48,4), v(60,4)); e("v_min_u32 v76, v76, v59")
        mfma(e, v(64,4), v(52,4), v(60,4)); e("v_cmp_ne_u32 vcc, s31, v76")
        mfma(e, v(64,4), v(56,4), v(60,4))
        e(f"s_cbranch_vccz {d}\ns_add_u32 s29, s29, 1\ns_add_u32 s91, s91, 1"); pload()
        e(f"s_waitcnt vmcnt(0)\ns_cmp_lt_u32 s29, s{sDead}\ns_cbranch_scc1 {l}\ns_mov_b32 s{sDead}, 0\n{d}:")
        tick(6)
        zero(QA, 16)
        e(f"""v_permlane32_swap_b32 v64, v66
v_permlane32_swap_b32 v65, v67
v_add_f32 v64, v64, v66
v_add_f32 v65, v65, v67
v_cvt_pk_bf16_f32 v76, v64, v65
s_mov_b64 exec, s[46:47]
buffer_store_dword v76, v{vM}, {s(WS,4)}, s57 offen {st}
s_mov_b64 exec, -1""")
        rdw(('Q',0,0), SA); rdw(('Q',0,1), SB)
    else:
        e(f"v_cmp_eq_u32 vcc, 0, v{vM}\ns_cbranch_vccz {N}_kv\ns_lshl_b32 s41, s43, 2\nv_mov_b32 v76, 0"); wait_flags(e, 76, "s41", 77, sleep=1)
        e.lab(N + "_kv"); kxload(); lg.all(); prep()
    rot = f"s_mov_b32 s{sT}, s56\ns_mov_b32 s56, s57\ns_mov_b32 s57, s58\ns_mov_b32 s58, s{sT}"
    e(rot + "\ns_add_u32 s31, s31, 1")
    if w < 2:
        if w >= cfg['wait2']: e("s_waitcnt vmcnt(0)")
        gload()
    if cfg['stamp'] and w == cfg.get('tw', 0) and cfg.get('ticks'):
        tk = cfg['ticks']; e("s_waitcnt lgkmcnt(0)")
        for i in range(len(tk)-1): e(f"s_sub_u32 s{sT}, s{70+2*tk[i+1]}, s{70+2*tk[i]}\ns_add_u32 s{84+i}, s{84+i}, s{sT}")
    e(f"s_branch {N}_step")
    e.lab(N + "_end")
    e(f"s_lshl_b32 s41, s43, 2\ns_add_u32 s41, s41, {F_M}\ns_waitcnt lgkmcnt(0)"); signal(e, "s41", 76)
    if cfg['stamp']:
        e("s_lshl_b32 s92, s36, 2\ns_add_u32 s92, s92, 4"); stamp(e, "s92", 1)
    e(rot + f"\ns_add_u32 s36, s36, 1\ns_cmp_lt_u32 s36, {cfg['layers']}\ns_cbranch_scc1 {N}_layer")
    if cfg['stamp']:
        for i in range(8): e(f"v_mov_b32 v{8+i}, s{84+i}")
        e(f"s_lshl_b32 s97, s2, 10\ns_add_u32 s97, s97, {STAMP+64+32*w}\ns_mov_b64 exec, 1\nbuffer_store_dwordx4 v[8:11], off, {s(WS,4)}, s97\nbuffer_store_dwordx4 v[12:15], off, {s(WS,4)}, s97 offset:16")
    e("s_branch END")
```

```python
from dsl import *
F_KV, F_M, F_O, F_X1, F_X2, F_PART, F_FIN, F_END = 0, 0x4000, 0x8000, 0xC000, 0x10000, 0x12000, 0x12800, 0x13000
PART, RING = 0x20000, 0xC0000
KVP, KVP_L = 0x100000, 0x400000
KVF, KVF_L = 0x900000, 0x10000
PQ, PQ_L = 0xA00000, 0x300000
X1, X1_L, X2 = 0x1000000, 0x240000, 0x1480000
KM, KM_L = 0x1800000, 0x1000000
KX, KX_L = 0x3800000, 0x2000000
OB, OB_L = 0x7800000, 0x1000000
STAMP = 0xA000000
WS, WT, XS, DB, OUT = 4, 8, 12, 16, 20
SPIN = 400000
sW, sDead, sT, sT2, sLds = 24, 25, 26, 27, 28
def srd(e, d, off, nbytes):
    e(f"s_load_dwordx2 {s(d,2)}, s[0:1], {off}\ns_mov_b32 s{d+2}, {nbytes}\ns_mov_b32 s{d+3}, 0x20000\ns_waitcnt lgkmcnt(0)")
def wait_flags(e, vaddr, soff, vt, srd_=WS, sleep=2):
    l, d = e.uid("wf"), e.uid("wd")
    e(f"""s_mov_b32 s29, 0
{l}:
buffer_load_dword v{vt}, v{vaddr}, {s(srd_,4)}, {soff} offen sc1
s_add_u32 s29, s29, 1
s_waitcnt vmcnt(0)
v_cmp_eq_u32 vcc, 0, v{vt}
s_cbranch_vccz {d}
s_sleep {sleep}
s_cmp_lt_u32 s29, s{sDead}
s_cbranch_scc1 {l}
s_mov_b32 s{sDead}, 0
{d}:""")
def signal(e, soff, vt, srd_=WS, val="1", barrier=True):
    d = e.uid("sg")
    e("s_waitcnt vmcnt(0)")
    if barrier: e(f"s_barrier\ns_cmp_lg_u32 s{sW}, 0\ns_cbranch_scc1 {d}")
    e(f"""v_mov_b32 v{vt}, {val}
s_mov_b64 exec, 1
buffer_store_dword v{vt}, off, {s(srd_,4)}, {soff} sc1
s_mov_b64 exec, -1
{d}:""")
def wreg(i, vbase, n=4):
    return a_(i, n) if i < 256 else v(vbase + i - 256, n)
def load_units(e, units, half, sbase=None):
    batches = []; cur = []; n = 0
    for u in units:
        k = len(u[0]) * 1024
        if n + k > half: batches.append(cur); cur = []; n = 0
        cur.append((u, n)); n += k
    batches.append(cur)
    def issue(b):
        c = 0
        for u, off in batches[b]:
            for i, (va, so, sr) in enumerate(u[0]):
                e(f"s_add_u32 m0, s{sLds}, {(b % 2) * half + off + i * 1024}\ns_mov_b32 s{sT}, {so}")
                e(f"buffer_load_dwordx4 v{va}, {s(sr,4)}, s{sT} offen lds"); c += 1
        return c
    issue(0)
    for b in range(len(batches)):
        c = issue(b + 1) if b + 1 < len(batches) else 0
        e(f"s_waitcnt vmcnt({c})")
        for u, off in batches[b]:
            for dst, va, imm in u[1]: e(f"ds_read_b64_tr_b16 {dst}, v{va} offset:{(b % 2) * half + off + imm}")
        e("s_waitcnt lgkmcnt(0)")
def tr_addr(e, vd, rowbytes, vt, vl):
    e(f"""v_lshrrev_b32 v{vd}, 4, v{vl}
v_bfe_u32 v{vt}, v{vl}, 2, 2
v_lshl_add_u32 v{vd}, v{vd}, 3, v{vt}
v_mul_u32_u24 v{vd}, {rowbytes}, v{vd}
v_and_b32 v{vt}, 3, v{vl}
v_lshl_add_u32 v{vd}, v{vt}, 3, v{vd}
v_add_u32 v{vd}, s{sLds}, v{vd}""")
def divmod_v(e, vq, vr, vx, d):
    m = (65536 + d - 1) // d
    assert all((x * m) >> 16 == x // d for x in range(512))
    e(f"v_mul_u32_u24 v{vq}, {m}, v{vx}\nv_lshrrev_b32 v{vq}, 16, v{vq}\nv_mul_u32_u24 v{vr}, {d}, v{vq}\nv_sub_u32 v{vr}, v{vx}, v{vr}")
def xlane(e, op, x, t, dpp8=False):
    if dpp8: e(f"{op} v{x}, v{x}, v{x} row_ror:8 row_mask:0xf bank_mask:0xf")
    for sw in ("v_permlane16_swap_b32", "v_permlane32_swap_b32"):
        e(f"v_mov_b32 v{t}, v{x}\n{sw} v{x}, v{t}\n{op} v{x}, v{x}, v{t}")
def ln_consts(e, vg, vw, vl, vt):
    e(f"""v_and_b32 v{vg}, 7, v{vl}
s_lshl_b32 s{sT}, s{sW}, 3
v_add_u32 v{vg}, s{sT}, v{vg}
v_and_b32 v{vw}, 15, v{vg}
v_lshlrev_b32 v{vw}, 4, v{vw}
v_mul_u32_u24 v{vg}, 1152, v{vg}
v_lshrrev_b32 v{vt}, 3, v{vl}
v_lshl_add_u32 v{vg}, v{vt}, 4, v{vg}
v_lshl_add_u32 v{vw}, v{vt}, 8, v{vw}
s_lshr_b32 s{sT}, s{sW}, 1
s_mul_i32 s{sT}, s{sT}, 18432
v_add_u32 v{vw}, s{sT}, v{vw}""")
def ln_load(e, R0, vg, srd_, soff, sc="sc1"):
    for i in range(9): e(f"buffer_load_dwordx4 {v(R0+4*i,4)}, v{vg}, {s(srd_,4)}, {soff} offen offset:{128*i} {sc}")
def ln_math(e, R0, T):
    a, b, t, u = T, T + 1, T + 2, T + 3
    e(f"s_mov_b32 s{sT}, 0x3f803f80\nv_mov_b32 v{a}, 0\nv_mov_b32 v{b}, 0")
    for i in range(36):
        if i % 4 == 0: e(f"s_waitcnt vmcnt({8 - i // 4})")
        e(f"v_dot2_f32_bf16 v{a}, v{R0+i}, s{sT}, v{a}\nv_dot2_f32_bf16 v{b}, v{R0+i}, v{R0+i}, v{b}")
    xlane(e, "v_add_f32", a, t, True); xlane(e, "v_add_f32", b, t, True)
    e(f"""v_mul_f32 v{a}, 0x3ae38e39, v{a}
v_mul_f32 v{b}, 0x3ae38e39, v{b}
v_fma_f32 v{b}, -v{a}, v{a}, v{b}
v_max_f32 v{b}, 0, v{b}
v_cvt_pk_bf16_f32 v{t}, v{a}, v{b}
v_lshlrev_b32 v{a}, 16, v{t}
v_and_b32 v{b}, 0xffff0000, v{t}
v_add_f32 v{b}, 0x3727c5ac, v{b}
v_cvt_pk_bf16_f32 v{b}, v{b}, v{b}
v_lshlrev_b32 v{b}, 16, v{b}
v_sqrt_f32 v{b}, v{b}
v_cvt_pk_bf16_f32 v{b}, v{b}, v{b}
v_lshlrev_b32 v{b}, 16, v{b}
v_rcp_f32 v{t}, v{b}
v_mul_f32 v{a}, v{a}, v{t}
v_sub_f32 v{a}, 0, v{a}""")
    for i in range(36):
        p = T + 4 + 2 * (i % 2)
        e(f"""v_lshlrev_b32 v{p}, 16, v{R0+i}
v_and_b32 v{p+1}, 0xffff0000, v{R0+i}
v_pk_fma_f32 {v(p,2)}, {v(p,2)}, {v(t,2)}, {v(a,2)} op_sel_hi:[1,0,0]
v_cvt_pk_bf16_f32 v{R0+i}, v{p}, v{p+1}""")
def ln_write(e, R0, vw):
    for i in range(9): e(f"ds_write_b128 v{vw}, {v(R0+4*i,4)} offset:{2048*i}")
def mfma(e, d, a, b, c=None): e(f"v_mfma_f32_16x16x32_bf16 {d}, {a}, {b}, {d if c is None else c}")
def cvt(e, d, x, y): e(f"v_cvt_pk_bf16_f32 v{d}, v{x}, v{y}")
def gemm_x(e, vl16, XB, body):
    rd = lambda ks: e(f"ds_read_b128 {v(XB+8*(ks%2),4)}, v{vl16} offset:{ks*1024}\nds_read_b128 {v(XB+8*(ks%2)+4,4)}, v{vl16} offset:{(18+ks)*1024}")
    rd(0); rd(1)
    for ks in range(18):
        e(f"s_waitcnt lgkmcnt({2 if ks < 17 else 0})")
        body(ks, [v(XB + 8 * (ks % 2), 4), v(XB + 8 * (ks % 2) + 4, 4)])
        if ks + 2 < 18: rd(ks + 2)
def resid_out(e, acc, xr, t):
    for j in range(2):
        e(f"""v_lshlrev_b32 v{t}, 16, v{xr+j}
v_and_b32 v{t+1}, 0xffff0000, v{xr+j}
v_add_f32 v{t}, v{t}, v{acc+2*j}
v_add_f32 v{t+1}, v{t+1}, v{acc+2*j+1}
v_cvt_pk_bf16_f32 v{xr+j}, v{t}, v{t+1}""")
def stamp(e, idx, en):
    if not en: return
    d = e.uid("st")
    e(f"""s_cmp_lg_u32 s{sW}, 0
s_cbranch_scc1 {d}
s_memrealtime s[98:99]
s_lshl_b32 s97, s2, 10
s_add_u32 s97, s97, {STAMP}
s_add_u32 s97, s97, {idx}
s_waitcnt lgkmcnt(0)
v_mov_b32 v7, s98
s_mov_b64 exec, 1
buffer_store_dword v7, off, {s(WS,4)}, s97
s_mov_b64 exec, -1
{d}:""")
```

```python
import sys, json
from gen_common import *
from gen_a import role_p1, role_p2
from gen_b import role_p3, role_p4
from gen_ch import chain_setup, chain_wave
KN = "interleave_layers__linear_attn_block__memory_aug_recurrent_mem_tr__prompt_kernel"
DEF = dict(layers=2, stamp=0, ng1=22, g1_first=20, n1_l3=2, ng2=4, ns3=5, ng4=3, early1=0, w1=[1,1,0], dp2=0, wait2=0, pw=10, pf=23, sl3=1, ps=96, pb=14, pb3=10, b3=45, vmd=1, spin=SPIN)
def far(e, name):
    e.lab(name + "_j"); e(f"s_branch {name}")
def build(**kw):
    cfg = dict(DEF); cfg.update(kw)
    e = Asm()
    e("s_cmp_ge_u32 s2, 256\ns_cbranch_scc0 START\ns_endpgm\nSTART:")
    srd(e, WS, 96, 0x10000000); srd(e, DB, 88, 256)
    e(f"""v_lshrrev_b32 v1, 6, v0
v_and_b32 v0, 63, v0
v_readfirstlane_b32 s{sW}, v1
v_lshlrev_b32 v1, 4, v0
s_mov_b32 s{sDead}, {cfg['spin']}
s_and_b32 s40, s2, 7
s_lshr_b32 s41, s2, 3
s_mov_b32 s34, 0""")
    for i in range(84, 92): e(f"s_mov_b32 s{i}, 0")
    stamp(e, 12, cfg['stamp'])
    e(f"""s_mov_b32 s52, s41
s_cmp_eq_u32 s40, 0
s_cbranch_scc1 CH
s_cmp_ge_u32 s40, 6
s_cbranch_scc1 R67
s_sub_u32 s40, s40, 1
s_lshl_b32 s40, s40, 5
s_add_u32 s40, s40, s41
s_mul_i32 s52, s40, 13108
s_lshr_b32 s52, s52, 16
s_mul_i32 s53, s52, 5
s_sub_u32 s53, s40, s53
s_lshr_b32 s32, s40, 3
s_and_b32 s33, s40, 7
s_mov_b32 s34, 1
s_branch P1
R67:
s_cmp_eq_u32 s40, 7
s_cbranch_scc1 R7
s_mov_b32 s32, 20
s_sub_u32 s33, s41, 24
s_cmp_ge_u32 s41, 24
s_cbranch_scc1 P1
s_cmp_ge_u32 s41, 12
s_cselect_b32 s32, 1, 0
s_mul_i32 s33, s32, 12
s_sub_u32 s33, s41, s33
s_branch P4
R7:
s_mov_b32 s32, 2
s_mov_b32 s33, s41
s_cmp_lt_u32 s41, 12
s_cbranch_scc1 P4
s_mov_b32 s32, 21
s_sub_u32 s33, s41, 12
s_cmp_lt_u32 s41, 20
s_cbranch_scc1 P1
s_sub_u32 s41, s41, 20
s_mul_i32 s32, s41, 86
s_lshr_b32 s32, s32, 8
s_mul_i32 s33, s32, 3
s_sub_u32 s33, s41, s33
s_branch P2""")
    role_p1(e, cfg); role_p3(e, cfg); role_p2(e, cfg); role_p4(e, cfg)
    e.lab("END"); e("s_waitcnt vmcnt(0)\ns_endpgm")
    chain_setup(e, cfg)
    for md in "nf":
        for w in range(4): e.fence(); chain_wave(e, cfg, md, w)
    head = "".join(l for l in open("cdna_kernels/" + KN[:-7] + ".s.ref") if l.startswith(";") and "@launch" not in l)
    return head + f"""; @launch grid=(256,1,1) block=(256,1,1) lds=163840
.amdgcn_target "amdgcn-amd-amdhsa--gfx950"
.text
.globl {KN}
.p2align 8
.type {KN},@function
{KN}:
""" + e.text() + f"""s_endpgm
.section .rodata,"a"
.p2align 6
.amdhsa_kernel {KN}
  .amdhsa_next_free_vgpr 512
  .amdhsa_next_free_sgpr 102
  .amdhsa_accum_offset 256
  .amdhsa_group_segment_fixed_size 0
  .amdhsa_kernarg_size 104
  .amdhsa_user_sgpr_count 2
  .amdhsa_user_sgpr_kernarg_segment_ptr 1
  .amdhsa_system_sgpr_workgroup_id_x 1
.end_amdhsa_kernel
"""
if __name__ == "__main__":
    out = sys.argv[1]; kw = json.loads(sys.argv[2]) if len(sys.argv) > 2 else {}
    open(out, "w").write(build(**kw))
```

```python
from gen_common import *
from gen_a import addr48, units48
SC = "0x3e0293ee"
def unit32(va, so, sr, dstep, dst, vtr):
    return ([(va, so, sr), (va, so + dstep, sr)], [(dst(t, hi), vtr, t * 32 + hi * 256) for t in range(2) for hi in range(2) if dst(t, hi)])
def m16(e, d, a, b, c=None): e(f"v_mfma_f32_16x16x16_bf16 {d}, {a}, {b}, {d if c is None else c}")
def softmax(e, vals, m, t):
    e(f"v_max3_f32 v{m}, v{vals[0]}, v{vals[1]}, v{vals[2]}")
    r = vals[3:]
    while len(r) >= 2: e(f"v_max3_f32 v{m}, v{m}, v{r[0]}, v{r[1]}"); r = r[2:]
    if r: e(f"v_max_f32 v{m}, v{m}, v{r[0]}")
    xlane(e, "v_max_f32", m, t)
    e(f"v_mul_f32 v{m}, s30, v{m}")
    for x in vals: e(f"v_fma_f32 v{x}, v{x}, s30, -v{m}")
    for x in vals: e(f"v_exp_f32 v{x}, v{x}")
def role_p3(e, cfg):
    NS = cfg['ns3']
    W = lambda m, ks, t: wreg(((m * 18 + ks) * 2 + t) * 4, 80)
    e.lab("P3")
    e("s_barrier")
    srd(e, WT, 48, 576 * 8192); srd(e, XS, 56, 576 * 8192); srd(e, OUT, 40, 576 * 8192)
    e(f"""s_mul_i32 s{sLds}, s{sW}, 40960
s_lshl_b32 s{sT2}, s52, 8
s_lshl_b32 s{sT}, s{sW}, 6
s_add_u32 s{sT2}, s{sT2}, s{sT}
v_lshrrev_b32 v50, 2, v0
v_and_b32 v51, 3, v0
v_lshlrev_b32 v50, 13, v50
v_lshl_add_u32 v50, v51, 4, v50
v_add_u32 v56, s{sT2}, v50""")
    tr_addr(e, 61, 64, 50, 0)
    load_units(e, [unit32(56, ks * 32 * 8192, sr, 16 * 8192, lambda t, hi: wreg(((m * 18 + ks) * 2 + t) * 4 + 2 * hi, 80, 2), 61)
                   for m, sr in enumerate((WT, XS, OUT)) for ks in range(18)], 20480)
    ln_consts(e, 2, 3, 0, 4)
    e("v_and_b32 v50, 15, v0\nv_lshrrev_b32 v51, 4, v0\nv_lshlrev_b32 v51, 2, v51\nv_sub_u32 v50, v50, v51")
    for i in range(4): e(f"v_cmp_le_i32 {s(44+2*i,2)}, {i}, v50")
    e(f"v_min_u32 v4, 2, v0\nv_lshlrev_b32 v4, 2, v4\nv_mov_b32 v5, 0\ns_mov_b32 s30, {SC}\ns_mov_b32 s36, 0\ns_barrier")
    e("v_bfe_u32 v50, v0, 2, 2\nv_and_b32 v51, 1, v0\nv_lshl_add_u32 v50, v50, 1, v51\nv_and_b32 v51, 16, v0\nv_lshl_add_u32 v50, v50, 5, v51\nv_lshrrev_b32 v51, 5, v0\nv_lshl_add_u32 v0, v51, 8, v50")
    stamp(e, 0, cfg['stamp'])
    e.lab("P3_layer")
    e(f"s_mov_b32 s37, s53\ns_mov_b32 s38, 36864\ns_mov_b32 s39, {36864+24576}")
    e.lab("P3_loop")
    e("s_cmp_ge_u32 s37, 64\ns_cbranch_scc1 P3_att")
    e(f"s_lshl_b32 s40, s36, 6\ns_add_u32 s40, s40, s37\ns_lshl_b32 s41, s40, 7\ns_add_u32 s41, s41, {F_X1}"); wait_flags(e, 4, "s41", 50)
    e(f"s_mul_i32 s41, s40, 36864\ns_add_u32 s41, s41, {X1}"); ln_load(e, 8, 2, WS, "s41")
    ln_math(e, 8, 44)
    e("s_barrier"); ln_write(e, 8, 3); e("s_waitcnt lgkmcnt(0)\ns_barrier")
    K, V = 8, 24
    def body(ks, x):
        c = "0" if ks == 0 else None
        for mt in range(2):
            for t in range(2):
                mfma(e, v(K + 8 * mt + 4 * t, 4), W(0, ks, t), x[mt], c); mfma(e, v(V + 8 * t + 4 * mt, 4), x[mt], W(1, ks, t), c)
    gemm_x(e, 1, 60, body)
    e(f"""s_lshl_b32 s40, s40, 5
s_add_u32 s40, s40, s52
s_lshl_b32 s41, s36, 5
s_add_u32 s41, s41, s52
s_lshl_b32 s41, s41, 6
s_add_u32 s41, s41, s37
s_lshl_b32 s41, s41, 14
s_add_u32 s41, s41, {KX}
s_lshl_b32 s{sT}, s{sW}, 10
s_add_u32 s41, s41, s{sT}
s_add_u32 s42, s41, 4096
s_add_u32 s43, s41, s{sT}
s_add_u32 s43, s43, 8192
s_add_u32 s{sT2}, s{sT}, s38
v_add_u32 v6, s{sT2}, v1
v_add_u32 v76, s{sT}, v6""")
    for mt in range(2):
        for i in range(4): cvt(e, 40 + 4 * mt + i, K + 8 * mt + i, K + 8 * mt + 4 + i)
        e(f"buffer_store_dwordx4 {v(40+4*mt,4)}, v1, {s(WS,4)}, s{41+mt} offen sc1\nds_write_b128 v6, {v(40+4*mt,4)} offset:{4096*mt}")
    for t in range(2):
        for i in range(4): cvt(e, 48 + 4 * t + i, V + 8 * t + 2 * i, V + 8 * t + 2 * i + 1)
        e(f"buffer_store_dwordx4 {v(48+4*t,4)}, v1, {s(WS,4)}, s43 offen offset:{1024*t} sc1\nds_write_b128 v76, {v(48+4*t,4)} offset:{16384+1024*t}")
    e(f"s_lshl_b32 s41, s40, 2\ns_waitcnt lgkmcnt(0)")
    def bodyq(ks, x):
        if ks == 9: signal(e, "s41", 56)
        for mt in range(2):
            for t in range(2): mfma(e, v(K + 8 * mt + 4 * t, 4), W(2, ks, t), x[mt], "0" if ks == 0 else None)
    gemm_x(e, 1, 60, bodyq)
    for mt in range(2):
        for i in range(4): cvt(e, 40 + 4 * mt + i, K + 8 * mt + i, K + 8 * mt + 4 + i)
        e(f"ds_write_b128 v6, {v(40+4*mt,4)} offset:{8192+4096*mt}")
    e("s_waitcnt lgkmcnt(0)")
    e.lab("P3_att")
    e(f"s_cmp_lt_u32 s37, {NS}\ns_cbranch_scc1 P3_next\ns_barrier\nv_add_u32 v6, s39, v1\ns_lshl_b32 s{sT}, s{sW}, 11\nv_add_u32 v76, s{sT}, v6")
    Q, S = 8, 56
    for i in range(8): e(f"ds_read_b128 {v(Q+4*i,4)}, v6 offset:{8192+1024*i}")
    for kt in range(2):
        for ks in range(4): e(f"ds_read_b128 {v(40+4*ks,4)}, v6 offset:{4096*kt+1024*ks}")
        e("s_waitcnt lgkmcnt(0)")
        for ks in range(4):
            c = "0" if ks == 0 else None
            if kt == 0: mfma(e, v(S, 4), v(40 + 4 * ks, 4), v(Q + 4 * ks, 4), c)
            mfma(e, v(S + 4 + 4 * kt, 4), v(40 + 4 * ks, 4), v(Q + 16 + 4 * ks, 4), c)
    e(f"""s_lshl_b32 s40, s36, 6
s_add_u32 s40, s40, s37
s_sub_u32 s40, s40, {NS}
s_lshl_b32 s43, s40, 5
s_add_u32 s43, s43, s52
s_lshl_b32 s41, s43, 2
s_add_u32 s41, s41, {F_M}"""); wait_flags(e, 5, "s41", 77, sleep=1)
    e(f"""s_lshl_b32 s41, s36, 5
s_add_u32 s41, s41, s52
s_lshl_b32 s41, s41, 6
s_add_u32 s41, s41, s37
s_lshl_b32 s41, s41, 12
s_add_u32 s41, s41, {KM-4096*NS}
s_lshl_b32 s42, s{sW}, 9
s_add_u32 s42, s42, s41
v_lshrrev_b32 v77, 1, v1""")
    for ks in range(4): e(f"buffer_load_dwordx4 {v(40+4*ks,4)}, v0, {s(WS,4)}, s41 offen offset:{512*ks} sc1")
    e(f"buffer_load_dwordx2 v[78:79], v77, {s(WS,4)}, s42 offen offset:2048 sc1\nv_mov_b32 v77, 0xff800000")
    for i in range(4): e(f"v_cndmask_b32 v{S+i}, v77, v{S+i}, {s(44+2*i,2)}\nv_cndmask_b32 v{S+8+i}, v77, v{S+8+i}, {s(44+2*i,2)}")
    for ks in range(4):
        e(f"s_waitcnt vmcnt({4-ks})")
        for mt in range(2): mfma(e, v(S + 12 + 4 * mt, 4), v(40 + 4 * ks, 4), v(Q + 16 * mt + 4 * ks, 4), "0" if ks == 0 else None)
    e("ds_read_b128 v[8:11], v76 offset:16384\nds_read_b128 v[12:15], v76 offset:17408")
    for i in range(4): e(f"v_mov_b32 v{16+i}, 0x3f803f80")
    for r in (22, 23, 29, 30, 33, 34): e(f"v_mov_b32 v{r}, 0")
    softmax(e, [S, S + 1, S + 2, S + 3, S + 12, S + 13], 36, 37)
    softmax(e, list(range(S + 4, S + 12)) + [S + 16, S + 17], 36, 37)
    cvt(e, 20, S, S + 1); cvt(e, 21, S + 2, S + 3)
    for i in range(4): cvt(e, 24 + i, S + 4 + 2 * i, S + 5 + 2 * i)
    for mt in range(2): cvt(e, 28 + 4 * mt, S + 12 + 4 * mt, S + 13 + 4 * mt); cvt(e, 31 + 4 * mt, S + 12 + 4 * mt, S + 13 + 4 * mt)
    e("s_waitcnt vmcnt(0) lgkmcnt(0)")
    for mt in range(2): m16(e, v(56 + 4 * mt, 4), v(16, 2), v(28 + 4 * mt, 2), "0")
    for mt in range(2):
        for t in range(2): m16(e, v(40 + 8 * mt + 4 * t, 4), v(78, 2), v(28 + 4 * mt + 2 * t, 2), "0")
    for mt in range(2): mfma(e, v(56 + 4 * mt, 4), v(16, 4), v(20 + 4 * mt, 4))
    for mt in range(2):
        for t in range(2): mfma(e, v(40 + 8 * mt + 4 * t, 4), v(8 + 4 * t, 4), v(20 + 4 * mt, 4))
    e(f"""v_rcp_f32 v56, v56
v_rcp_f32 v60, v60
s_lshl_b32 s41, s40, 6
s_add_u32 s41, s41, s52
s_lshl_b32 s41, s41, 2
s_add_u32 s41, s41, s{sW}
s_lshl_b32 s41, s41, 10
s_add_u32 s41, s41, {OB}
s_add_u32 s42, s41, 0x20000""")
    for mt in range(2):
        for i in range(8): e(f"v_mul_f32 v{40+8*mt+i}, v{40+8*mt+i}, v{56+4*mt}")
        for i in range(4): cvt(e, 64 + 4 * mt + i, 40 + 8 * mt + 2 * i, 41 + 8 * mt + 2 * i)
        e(f"buffer_store_dwordx4 {v(64+4*mt,4)}, v1, {s(WS,4)}, s{41+mt} offen sc1")
    e(f"s_lshl_b32 s41, s43, 2\ns_add_u32 s41, s41, {F_O}"); signal(e, "s41", 77)
    e.lab("P3_next")
    e(f"""s_mov_b32 s{sT}, s38
s_mov_b32 s38, s39
s_mov_b32 s39, s{sT}
s_add_u32 s37, s37, {NS}
s_cmp_lt_u32 s37, {64+NS}
s_cbranch_scc1 P3_loop
s_add_u32 s36, s36, 1
s_cmp_lt_u32 s36, {cfg['layers']}
s_cbranch_scc1 P3_layer
s_branch END""")

def role_p4(e, cfg):
    NG = cfg['ng4']
    W = lambda ks, t: wreg((ks * 3 + t) * 4, 128)
    W2 = lambda ks, t, hi: wreg((ks * 3 + t) * 4 + 2 * hi, 128, 2)
    e.lab("P4")
    srd(e, WT, 64, 4096 * 1152); srd(e, OUT, 80, 2048 * 1152)
    e(f"s_mul_i32 s{sLds}, s{sW}, 40960\ns_mul_i32 s35, s33, 96\ns_mul_i32 s{sT}, s{sW}, {1024*1152}\ns_add_u32 s40, s35, s{sT}")
    addr48(e, 56, lambda: e("v_lshrrev_b32 v51, 2, v54\nv_lshlrev_b32 v51, 4, v51\nv_lshl_add_u32 v51, v53, 2, v51\nv_and_b32 v54, 3, v54\nv_add_u32 v51, v51, v54"), "s40")
    tr_addr(e, 61, 96, 50, 0)
    load_units(e, units48(e, lambda ks: 56, 32, W2, lambda ks: 32 * ks * 1152), 18432)
    e("v_mov_b32 v4, 128"); wait_flags(e, 4, 0, 5, DB)
    e(f"""v_and_b32 v50, 15, v0
v_lshrrev_b32 v51, 4, v0
v_mul_u32_u24 v2, 1152, v50
v_lshl_add_u32 v2, v51, 3, v2
s_min_u32 s{sT}, s{sW}, 2
s_lshl_b32 s{sT2}, s{sT}, 5
s_add_u32 s35, s35, s{sT2}
v_add_u32 v2, s35, v2
s_lshl_b32 s{sT}, s{sT}, 10
v_add_u32 v5, s{sT}, v1
s_mul_i32 s{sT}, s{sW}, 3072
v_add_u32 v3, s{sT}, v1
v_and_b32 v4, 7, v0
s_lshl_b32 s{sT}, s{sW}, 3
v_add_lshl_u32 v4, v4, s{sT}, 2
s_mov_b32 s36, 0
s_barrier""")
    NF = 24; AC = 104
    e.lab("P4_layer"); e("s_mov_b32 s37, s32"); e.lab("P4_unit")
    e(f"s_lshl_b32 s40, s36, 7\ns_add_u32 s40, s40, s37\ns_lshr_b32 s41, s40, 1\ns_lshl_b32 s41, s41, 7\ns_add_u32 s41, s41, {F_O}"); wait_flags(e, 4, "s41", 8, sleep=1)
    e(f"""s_mul_i32 s42, s40, 18432
s_add_u32 s42, s42, {X1}
buffer_load_dwordx2 v[116:117], v2, {s(WS,4)}, s42 offen sc1
s_lshl_b32 s41, s40, 2
s_add_u32 s41, s41, s{sW}
s_lshl_b32 s41, s41, 15
s_add_u32 s41, s41, {OB}""")
    def ld(ks):
        e(f"buffer_load_dwordx4 {v(8+4*(ks%NF),4)}, v1, {s(WS,4)}, s41 offen offset:{1024*(ks%4)} sc1")
        if ks % 4 == 3: e("s_add_u32 s41, s41, 4096")
    for ks in range(NF): ld(ks)
    for ks in range(32):
        e(f"s_waitcnt vmcnt({min(NF-1, 31-ks)})")
        for t in range(3): mfma(e, v(AC + 4 * t, 4), W(ks, t), v(8 + 4 * (ks % NF), 4), "0" if ks == 0 else None)
        if ks + NF < 32: ld(ks + NF)
    for t in range(3): e(f"ds_write_b128 v3, {v(AC+4*t,4)} offset:{1024*t}")
    e("s_waitcnt lgkmcnt(0)\ns_barrier")
    for w in range(4): e(f"ds_read_b128 {v(8+4*w,4)}, v5 offset:{3072*w}")
    e("s_waitcnt lgkmcnt(0)")
    for i in range(4): e(f"v_add_f32 v{8+i}, v{8+i}, v{12+i}\nv_add_f32 v{16+i}, v{16+i}, v{20+i}")
    for i in range(4): e(f"v_add_f32 v{8+i}, v{8+i}, v{16+i}")
    resid_out(e, 8, 116, 24)
    e(f"""s_mul_i32 s42, s37, 18432
s_cmp_eq_u32 s36, {cfg['layers']-1}
s_cbranch_scc1 P4_out
s_add_u32 s42, s42, {X2}
s_cmp_eq_u32 s{sW}, 3
s_cbranch_scc1 P4_s1
buffer_store_dwordx2 v[116:117], v2, {s(WS,4)}, s42 offen sc1
P4_s1:
s_lshr_b32 s41, s37, 1
s_lshl_b32 s41, s41, 5
s_and_b32 s{sT}, s37, 1
s_mul_i32 s{sT}, s{sT}, 12
s_add_u32 s41, s41, s{sT}
s_add_u32 s41, s41, s33
s_lshl_b32 s41, s41, 2
s_add_u32 s41, s41, {F_X2}"""); signal(e, "s41", 8)
    e(f"""s_branch P4_next
P4_out:
s_cmp_eq_u32 s{sW}, 3
s_cbranch_scc1 P4_s2
buffer_store_dwordx2 v[116:117], v2, {s(OUT,4)}, s42 offen
P4_s2:
s_barrier
P4_next:
s_add_u32 s37, s37, {NG}
s_cmp_lt_u32 s37, 128
s_cbranch_scc1 P4_unit
s_add_u32 s36, s36, 1
s_cmp_lt_u32 s36, {cfg['layers']}
s_cbranch_scc1 P4_layer""")
    stamp(e, 4, cfg['stamp'])
    e("s_branch END")
```

```python
from gen_common import *
from gen_b import unit32, m16, SC
LPAIR = [('Q',0),('Q',3),('Q',6)]
OPAIR = [(0,0),(0,1),(4,0),(4,1),(6,0),(6,1)]
LOP = {}
for i, (m, t) in enumerate(LPAIR): LOP[(m,t,0)] = 2*i; LOP[(m,t,1)] = 2*i+1
for i, (t, t2) in enumerate(OPAIR): LOP[('O',t,t2)] = 6+2*i; LOP[('O',t+1,t2)] = 7+2*i
ROP = {}
for m in 'QKVO':
    for t in range(9):
        for x in range(2):
            if (m,t,x) not in LOP: ROP[(m,t,x)] = len(ROP)
assert len(ROP) == 54
vL, vI, vP, vM, vX, vO, vW = 1, 0, 2, 3, 4, 5, 6
A0, QA, KA, SA, SB = 8, 44, 52, 60, 68
STG = [[8192, 9216, 10240], [11264, 12288, 13312], [14336, 15360, 0]]
class Lg:
    def __init__(s_, e): s_.e = e; s_.q = []
    def op(s_, txt, tag): s_.e(txt); s_.q.append(tag)
    def wait(s_, *tags):
        idx = [i for i, t in enumerate(s_.q) if t in tags]
        if not idx: return
        n = len(s_.q) - 1 - max(idx); s_.e(f"s_waitcnt lgkmcnt({n})"); s_.q = s_.q[max(idx)+1:]
    def all(s_): s_.e("s_waitcnt lgkmcnt(0)"); s_.q = []
def chain_setup(e, cfg):
    e.lab("CH")
    e(f"""s_setprio 3
s_getreg_b32 s54, hwreg(HW_REG_XCC_ID, 0, 4)
s_add_u32 s54, s54, 1
s_mul_i32 s{sLds}, s{sW}, 36864
s_add_u32 s{sLds}, s{sLds}, 16384
v_add_u32 v{vW}, s{sLds}, v1
s_lshl_b32 s{sT}, s{sW}, 3
v_lshrrev_b32 v50, 3, v0
v_add_u32 v50, s{sT}, v50
v_mul_u32_u24 v50, 96, v50
v_add_lshl_u32 v50, v50, s52, 7
v_and_b32 v51, 7, v0
v_lshl_add_u32 v{vP}, v51, 4, v50
s_mul_i32 s59, s52, 3
s_add_u32 s59, s59, s{sW}
s_lshl_b32 s59, s59, 12
s_add_u32 s59, s59, {PART}
s_mov_b32 s60, {PART}
s_mov_b32 s61, {PART+4096}
s_mov_b32 s62, {PART+8192}
v_and_b32 v50, 15, v0
v_cmp_gt_u32 s[46:47], 6, v50
v_lshrrev_b32 v51, 1, v50
s_mul_i32 s63, s{sW}, 3072
v_lshl_add_u32 v{vM}, v51, 10, s63
v_and_b32 v51, 1, v0
v_lshl_add_u32 v{vM}, v51, 5, v{vM}
s_lshr_b32 s{sT}, s52, 1
s_lshl_b32 s{sT}, s{sT}, 6
s_and_b32 s{sT2}, s52, 1
s_lshl_b32 s{sT2}, s{sT2}, 4
s_add_u32 s{sT}, s{sT}, s{sT2}
v_add_u32 v{vM}, s{sT}, v{vM}
v_bfe_u32 v51, v0, 4, 1
v_lshl_add_u32 v{vM}, v51, 3, v{vM}
v_lshrrev_b32 v51, 5, v0
v_lshl_add_u32 v{vM}, v51, 2, v{vM}
s_mov_b32 s56, {RING}
s_mov_b32 s57, {RING+9216}
s_mov_b32 s58, {RING+18432}
v_mov_b64 v[8:9], 0
v_mov_b64 v[10:11], 0
v_mov_b32 v12, -1""")
    for u in range(3): e(f"buffer_store_dwordx4 v[8:11], v{vP}, {s(WS,4)}, s{60+u} offen sc1")
    e(f"s_cmp_eq_u32 s{sW}, 3\ns_cbranch_scc1 CH_np\ns_mov_b64 exec, s[46:47]")
    for u in range(3): e(f"buffer_store_dword v12, v{vM}, {s(WS,4)}, s{56+u} offen sc1")
    e("s_mov_b64 exec, -1\nCH_np:\ns_lshl_b32 s41, s52, 2"); signal(e, "s41", 50, DB, "s54")
    srd(e, WT, 40, 576*8192); srd(e, XS, 48, 576*8192); srd(e, OUT, 56, 576*8192); srd(e, 64, 64, 4096*1152); srd(e, 32, 32, 9216)
    e(f"""v_lshrrev_b32 v50, 4, v0
v_bfe_u32 v51, v0, 3, 1
v_bfe_u32 v52, v0, 2, 1
v_and_b32 v53, 3, v0
v_lshl_add_u32 v54, v50, 1, v52
v_lshl_add_u32 v54, v51, 3, v54
v_lshlrev_b32 v54, 13, v54
v_lshl_add_u32 v54, v53, 4, v54
s_lshl_b32 s{sT2}, s52, 8
s_lshl_b32 s{sT}, s{sW}, 6
s_add_u32 s{sT2}, s{sT2}, s{sT}
v_add_u32 v76, s{sT2}, v54
v_lshrrev_b32 v54, 1, v50
v_lshlrev_b32 v54, 4, v54
v_lshl_add_u32 v54, v51, 2, v54
v_and_b32 v50, 1, v50
v_lshl_add_u32 v54, v50, 1, v54
v_add_u32 v54, v54, v52
v_mul_u32_u24 v54, 1152, v54
v_and_b32 v50, 1, v53
v_lshl_add_u32 v54, v50, 4, v54
s_mul_i32 s{sT2}, s52, {128*1152}
s_lshl_b32 s{sT}, s{sW}, 5
s_add_u32 s{sT2}, s{sT2}, s{sT}
v_add_u32 v78, s{sT2}, v54
v_lshrrev_b32 v50, 1, v53
v_lshl_add_u32 v77, v50, 7, v78""")
    tr_addr(e, 79, 64, 50, 0)
    def unit(m, t, h, dst):
        if m == 'O': return unit32(77 if t < 8 else 78, h*32*1152 + t*128, 64, 8*1152, dst, 79)
        return unit32(76, (2*t+h)*32*8192, {'Q': WT, 'K': XS, 'V': OUT}[m], 16*8192, dst, 79)
    us = []
    for m in 'QKV':
        for t in range(9):
            if (m,t,0) in ROP:
                for h in range(2): us.append(unit(m, t, h, lambda tn, hi: wreg(ROP[(m,t,tn)]*8 + 4*h + 2*hi, 80, 2)))
    for t in range(0, 9, 2):
        for h in range(4):
            if ('O',t,h//2) in ROP: us.append(unit('O', t, h, lambda tn, hi: wreg(ROP[('O',t+tn,h//2)]*8 + 4*(h%2) + 2*hi, 80, 2) if t+tn < 9 else None))
    load_units(e, us, 18432)
    lp = [[unit(m, t, h, lambda tn, hi: v(8 + 8*tn + 4*h + 2*hi, 2)) for h in range(2)] for m, t in LPAIR]
    lp += [[unit('O', t, 2*t2+h, lambda tn, hi: v(8 + 8*tn + 4*h + 2*hi, 2)) for h in range(2)] for t, t2 in OPAIR]
    for p, pr in enumerate(lp):
        for h in range(2):
            for i, (va, so, sr) in enumerate(pr[h][0]):
                e(f"s_add_u32 m0, s{sLds}, {p*4096+h*2048+i*1024}\ns_mov_b32 s{sT}, {so}\nbuffer_load_dwordx4 v{va}, {s(sr,4)}, s{sT} offen lds")
    for p, pr in enumerate(lp):
        e(f"s_waitcnt vmcnt({4*(8-p)})")
        for h in range(2):
            for dst, va, imm in pr[h][1]: e(f"ds_read_b64_tr_b16 {dst}, v{va} offset:{p*4096+h*2048+imm}")
        e("s_waitcnt lgkmcnt(0)")
        for i in range(4): e(f"ds_write_b128 v{vW}, {v(8+4*i,4)} offset:{p*4096+i*1024}")
        e("s_waitcnt lgkmcnt(0)")
    e("v_and_b32 v50, 15, v0\nv_mov_b32 v51, 0x3f80\nv_mov_b32 v52, 0x3f800000\nv_mov_b32 v11, 0")
    for j in range(3): e(f"v_cmp_eq_u32 vcc, {2*j}, v50\nv_cndmask_b32 v{8+j}, 0, v51, vcc\nv_cmp_eq_u32 vcc, {2*j+1}, v50\nv_cndmask_b32 v{8+j}, v{8+j}, v52, vcc")
    e(f"""v_and_b32 v12, 0xff, v1
ds_write_b128 v12, v[8:11] offset:7168
v_lshrrev_b32 v51, 2, v50
v_lshrrev_b32 v52, 4, v0
v_and_b32 v53, 3, v0
v_lshlrev_b32 v{vX}, 8, v51
v_lshl_add_u32 v{vX}, v52, 6, v{vX}
v_lshl_add_u32 v{vX}, v53, 2, v{vX}
s_lshl_b32 s{sT}, s{sW}, 10
s_add_u32 s{sT}, s{sT}, 3072
v_add_u32 v{vX}, s{sT}, v{vX}
v_cmp_le_u32 s[44:45], 2, v53
v_and_b32 v53, 1, v0
v_lshl_add_u32 v51, v51, 1, v53
v_lshlrev_b32 v51, 5, v51
v_and_b32 v54, 1, v52
v_lshl_add_u32 v51, v54, 4, v51
v_lshrrev_b32 v54, 1, v52
v_lshl_add_u32 v51, v54, 8, v51
s_lshl_b32 s{sT}, s{sW}, 9
v_add_u32 v{vO}, s{sT}, v51
v_mov_b32 v55, 128"""); wait_flags(e, 55, 0, 56, DB)
    e("v_and_b32 v55, 31, v0\nv_lshlrev_b32 v55, 2, v55"); wait_flags(e, 55, 0, 56, DB)
    e(f"""v_cmp_ne_u32 vcc, s54, v56
v_mov_b32 v51, 0x4444
v_mov_b32 v52, 0xeeee
v_cmp_eq_u32 s[48:49], 1, v53
s_mov_b32 s30, {SC}
s_mov_b32 s31, 1
s_mov_b32 s36, 0
v_cndmask_b32 v{vI}, v51, v52, s[48:49]
s_waitcnt lgkmcnt(0)
s_barrier""")
    stamp(e, 0, cfg['stamp'])
    e("s_cbranch_vccnz CH_far")
    for md in "nf":
        if md == 'f': e.lab("CH_far")
        for w in range(3): e(f"s_cmp_eq_u32 s{sW}, {w}\ns_cbranch_scc1 CH{md}{w}_layer")
        e(f"s_branch CH{md}3_layer")

def chain_wave(e, cfg, md, w):
    N = f"CH{md}{w}"; st = "sc1" if md == 'f' else ""
    lg = Lg(e); G = [(w+i) % 3 for i in range(3)]
    def wop(k): return wreg(ROP[k]*8, 80, 8)
    def sm(d, a, b): e(f"v_smfmac_f32_16x16x64_bf16 {v(d,4)}, {v(a,4)}, {b}, v{vI}")
    def rdw(k, dst):
        for h in range(2): lg.op(f"ds_read_b128 {v(dst+4*h,4)}, v{vW} offset:{LOP[k]*2048+h*1024}", k)
    def rd(dst, off, tag): lg.op(f"ds_read_b128 {v(dst,4)}, v{vL} offset:{off}", tag)
    def zero(r0, n):
        for i in range(0, n, 2): e(f"v_mov_b64 {v(r0+i,2)}, 0")
    def gload():
        e(f"s_add_u32 s40, s56, s63")
        for i in range(3): e(f"buffer_load_dwordx4 {v(A0+12*w+4*i,4)}, v{vL}, {s(WS,4)}, s40 offen offset:{1024*i} sc1")
    def gcheck(n=0):
        l, d = e.uid("gc"), e.uid("gd"); b = A0 + 12*w
        e(f"s_mov_b32 s29, 0\ns_waitcnt vmcnt({n})"); tick(11); e(f"{l}:\nv_max3_u32 v76, v{b}, v{b+1}, v{b+2}\nv_max3_u32 v77, v{b+3}, v{b+4}, v{b+5}")
        e(f"v_max3_u32 v76, v76, v{b+6}, v{b+7}\nv_max3_u32 v77, v77, v{b+8}, v{b+9}\nv_max3_u32 v76, v76, v{b+10}, v{b+11}\nv_max_u32 v76, v76, v77\nv_cmp_eq_u32 vcc, -1, v76")
        e(f"s_cbranch_vccz {d}\ns_add_u32 s29, s29, 1\ns_add_u32 s90, s90, 1"); gload()
        e(f"s_waitcnt vmcnt(0)\ns_cmp_lt_u32 s29, s{sDead}\ns_cbranch_scc1 {l}\ns_mov_b32 s{sDead}, 0\n{d}:")
        tick(12)
        for i in range(3): lg.op(f"ds_write_b128 v{vL}, {v(b+4*i,4)} offset:{STG[w][i]}", 'gw')
    VMO = [2048, 2560, 7424]
    def vmout():
        if cfg['vmd']: return
        e(f"v_lshrrev_b32 v7, 1, v{vL}")
        for i in range(3): e(f"ds_read_b64 {v(44+2*i,2)}, v7 offset:{VMO[i]}")
        lg.all()
        for i in range(0 if cfg.get('nofar') else 3): e(f"buffer_store_dwordx2 {v(44+2*i,2)}, v7, {s(WS,4)}, s39 offen offset:{512*i} sc1")
    def prep():
        zero(QA, 16); rdw(('Q',3*G[0],0), SA)
    tr = lambda i: 70 + 2*cfg['ticks'].index(i)
    def tick(i):
        if cfg['stamp'] and w == cfg.get('tw', 0) and i in cfg.get('ticks', ()): e(f"s_memtime {s(tr(i),2)}")
    e.lab(N + "_layer")
    e(f"""s_mov_b32 s37, 0
s_lshl_b32 s43, s36, 11
s_add_u32 s43, s43, s52
s_lshl_b32 s42, s36, 5
s_add_u32 s42, s42, s52
s_lshl_b32 s38, s42, 20
s_add_u32 s38, s38, {KX+2048*w}
s_lshl_b32 s42, s42, 18
s_add_u32 s42, s42, {KM-1536}""")
    if w < 3:
        e(f"v_bfe_u32 v76, v{vL}, 5, 3\nv_mul_u32_u24 v76, 1152, v76\nv_and_b32 v77, 16, v{vL}\nv_add_u32 v76, v76, v77\nv_lshrrev_b32 v77, 8, v{vL}\nv_lshl_add_u32 v76, v77, 5, v76")
        for i in range(3): e(f"buffer_load_dwordx4 {v(A0+12*w+4*i,4)}, v76, s[32:35], 0 offen offset:{128*(3*w+i)}")
    else:
        e(f"s_lshl_b32 s41, s43, 2\nv_and_b32 v76, 128, v{vL}"); wait_flags(e, 76, "s41", 77, sleep=1)
    prep()
    e.lab(N + "_step")
    tick(0)
    if w < 3: gcheck(); lg.all()
    e("s_barrier")
    tick(1)
    if cfg['stamp'] and w == 0 and cfg.get('steps'):
        e(f"s_lshl_b32 s92, s36, 6\ns_add_u32 s92, s92, s37\ns_lshl_b32 s92, s92, 2\ns_add_u32 s92, s92, 512"); stamp(e, "s92", 1)
    for g in G:
        if g != w:
            for i in range(3): rd(A0+12*g+4*i, STG[g][i], f"A{3*g+i}")
    seq = []
    for t in (3*G[0], 3*G[1]): seq += [('Q',t,0),('K',t,0),('K',t,1),('Q',t+1,1),('Q',t+1,0),('K',t+1,0),('Q',t,1),('K',t+1,1),('Q',t+2,0),('K',t+2,0),('Q',t+2,1),('K',t+2,1)]
    t = 3*G[2]
    seq += [('Q',t,0),('Q',t+1,1),('Q',t+1,0),('Q',t+2,1),('Q',t+2,0),('K',t,0),('Q',t,1),('K',t,1),('K',t+1,0),('K',t+1,1),('K',t+2,0),('K',t+2,1)]
    pb = cfg['pb'] if w < 3 else cfg['pb3']
    for p, k in enumerate(seq):
        m, t, tn = k
        lg.wait(f"A{t}", k)
        sm((QA if m == 'Q' else KA) + 4*tn, A0+4*t, v(SA,8) if k in LOP else wop(k))
        if k in LOP and p < 30: rdw(seq[p+6], SA)
        if p == pb:
            tick(8); lg.wait(*[f"A{i}" for i in range(9)]); e("s_barrier"); tick(9)
            e(f"s_add_u32 s41, s38, 8192\ns_mov_b32 m0, {8192+2048*w}")
            for i in range(2): e(f"buffer_load_dwordx4 v{vL}, {s(WS,4)}, s38 offen offset:{1024*i} sc1 lds")
        if p == pb + 3:
            for i in range(2): e(f"buffer_load_dwordx4 {v(SB+4*i,4)}, v{vL}, {s(WS,4)}, s41 offen offset:{1024*i} sc1")
        if p == pb + 5 and w < 3: e(f"v_mov_b32 v76, -1\ns_mov_b64 exec, s[46:47]\nbuffer_store_dword v76, v{vM}, {s(WS,4)}, s58 offen {st}\ns_mov_b64 exec, -1")
        if p == pb + 8 and w == 3:
            e(f"s_cmp_lt_u32 s37, 63\ns_cselect_b32 s41, 16384, 0\ns_add_u32 s41, s41, s38\ns_sub_u32 s41, s41, 6144\ns_add_u32 s40, s41, 8192\nv_lshlrev_b32 v{vM}, 3, v{vL}")
            e(f"buffer_load_dword v7, v{vM}, {s(WS,4)}, s41 offen sc1\nbuffer_load_dword v7, v{vM}, {s(WS,4)}, s40 offen sc1")
        if p == pb + 9 and w == 3: e(f"s_lshl_b32 s41, s43, 2\nbuffer_load_dword v{vM}, off, {s(WS,4)}, s41 offset:256 sc1")
        if p == 31: zero(SA, 4)
        if p == 32: zero(SA+4, 4)
        if p == 33: e("\n".join(f"v_add_f32 v{QA+2*i}, v{QA+2*i}, v{QA+2*i+1}" for i in range(3)))
        if p == 34: e(f"v_add_f32 v{QA+6}, v{QA+6}, v{QA+7}"); cvt(e, 78, QA, QA+4)
        if p == 35: cvt(e, 79, QA+2, QA+6); lg.op(f"ds_write2_b32 v{vX}, v78, v79 offset0:8 offset1:12", 'q')
    tick(2)
    def vs(t, f0=None, f1=None):
        sm(SA, A0+4*t, wop(('V',t,0))); f0 and f0(); sm(SA+4, A0+4*t, wop(('V',t,1))); f1 and f1()
    vs(0, None, lambda: e("s_add_u32 s39, s42, 3584"))
    vs(1, lambda: e("\n".join(f"v_add_f32 v{KA+2*i}, v{KA+2*i}, v{KA+2*i+1}" for i in range(4))),
       lambda: (cvt(e, 76, KA, KA+4), cvt(e, 77, KA+2, KA+6), lg.op(f"ds_write2_b32 v{vX}, v76, v77 offset0:0 offset1:4", 'k')))
    vs(2)
    e(f"s_waitcnt vmcnt({5 if w == 3 else 3})"); lg.all(); e("s_barrier")
    rd(QA, 3072, "F0"); rd(8, 8192, 'x0'); rd(12, 12288, 'x0')
    def fm():
        e(f"s_waitcnt vmcnt({3 if w == 3 else 1})")
        if w == 3: e(f"s_cmp_eq_u32 s37, 0\ns_cbranch_scc1 {N}_nf\ns_lshl_b32 s41, s43, 2\ns_add_u32 s41, s41, {F_M-128}\ns_mov_b64 exec, 1\nbuffer_store_dword v{vI}, off, {s(WS,4)}, s41 sc1\ns_mov_b64 exec, -1\n{N}_nf:")
    vs(3, lambda: rd(QA+4, 4096, "F1"), lambda: (rd(16, 8192+1024, 'x1'), rd(20, 12288+1024, 'x1')))
    vs(4, lambda: (rd(QA+8, 5120, "F2"), rd(QA+12, 6144, "F3")), fm); vs(5)
    F = lambda i: v(QA+4*i, 4)
    def sx(ks, b):
        lg.wait(f"x{ks}", f"F{ks}")
        for kt in range(2): mfma(e, v(24+4*kt,4), v(b+4*kt,4), F(ks), "0" if ks == 0 else None)
        if ks < 2: rd(b, 8192+1024*(ks+2), f"x{ks+2}"); rd(b+4, 12288+1024*(ks+2), f"x{ks+2}")
    sx(0, 8); sx(1, 16); lg.wait("F3")
    for ks in range(4):
        mfma(e, v(76,4), F(ks), F(ks), "0" if ks == 0 else None)
        if w == 3 and ks == 1 and not cfg.get('nofar'):
            e("s_andn2_b64 exec, exec, s[44:45]")
            for i in range(4): e(f"buffer_store_dwordx4 {F(i)}, v{vO}, {s(WS,4)}, s42 offen offset:{512*i} sc1")
            e("s_mov_b64 exec, -1")
    sx(2, 8); sx(3, 16)
    tick(3)
    vals = list(range(24, 32)) + [76, 77]
    vs(6, lambda: rdw(('O',0,0), 44), lambda: (rdw(('O',1,0), 52), e("v_mov_b32 v8, 0x3f803f80\nv_mov_b32 v9, v8\nv_max3_f32 v12, v76, v77, v24\nv_max3_f32 v12, v12, v25, v26")))
    vs(7, lambda: e("v_max3_f32 v12, v12, v27, v28\nv_max3_f32 v13, v29, v30, v31\nv_max_f32 v12, v12, v13\nv_max_f32 v13, v12, v13"),
       lambda: (rdw(('O',0,1), 32), e("v_permlane16_swap_b32 v12, v13\nv_max_f32 v12, v12, v13\nv_max_f32 v13, v12, v13")))
    vs(8, lambda: e("v_mov_b64 v[10:11], v[8:9]\nv_permlane32_swap_b32 v12, v13\nv_max_f32 v12, v12, v13"), lambda: e("v_mul_f32 v12, s30, v12\nv_mov_b32 v21, 0\nv_mov_b32 v22, 0"))
    for x in vals: e(f"v_fma_f32 v{x}, v{x}, s30, -v12")
    for i in range(4): e(f"v_add_f32 v{SA+2*i}, v{SA+2*i}, v{SA+2*i+1}")
    cvt(e, 78, SA, SA+2); cvt(e, 79, SA+4, SA+6)
    e(f"v_lshrrev_b32 v40, 1, v{vL}")
    if w == 3 or cfg['vmd']: e(f"buffer_store_dwordx2 v[78:79], v40, {s(WS,4)}, s39 offen offset:{512*w} sc1")
    else: lg.op(f"ds_write_b64 v40, v[78:79] offset:{VMO[w]}", 'vm')
    e(f"s_cmp_eq_u32 s37, 63\ns_cbranch_scc1 {N}_end")
    e("v_exp_f32 v76, v76\nv_exp_f32 v77, v77\nv_exp_f32 v24, v24"); cvt(e, 20, 76, 77); cvt(e, 23, 76, 77)
    e("v_exp_f32 v25, v25\nv_exp_f32 v26, v26"); m16(e, v(12,4), v(8,2), v(20,2), "0")
    e("v_exp_f32 v27, v27"); m16(e, v(SA,4), v(78,2), v(20,2), "0")
    e("v_exp_f32 v28, v28"); m16(e, v(SA+4,4), v(78,2), v(22,2), "0")
    e("v_exp_f32 v29, v29\nv_exp_f32 v30, v30\nv_exp_f32 v31, v31")
    for i in range(4): cvt(e, 16+i, 24+2*i, 25+2*i)
    zero(24, 4)
    mfma(e, v(12,4), v(8,4), v(16,4)); zero(28, 4)
    mfma(e, v(SA,4), v(SB,4), v(16,4)); zero(8, 4)
    mfma(e, v(SA+4,4), v(SB+4,4), v(16,4)); zero(20, 4)
    e("v_rcp_f32 v40, v12"); zero(16, 4)
    for i in range(4): e(f"v_mul_f32 v{SA+i}, v{SA+i}, v40")
    cvt(e, 76, SA, SA+1); cvt(e, 77, SA+2, SA+3)
    for i in range(4, 8): e(f"v_mul_f32 v{SA+i}, v{SA+i}, v40")
    cvt(e, 78, SA+4, SA+5); cvt(e, 79, SA+6, SA+7)
    e("s_mov_b64 exec, s[44:45]"); lg.op(f"ds_write_b128 v{vO}, v[76:79]", 'o'); e("s_mov_b64 exec, -1")
    rdw(('O',1,1), 60); zero(12, 4); e("v_mov_b32 v43, s31")
    lg.wait('o'); e("s_barrier")
    tick(4)
    rd(68, 0, 'o0'); rd(72, 1024, 'o1'); e("v_mov_b32 v79, s31")
    def pack(u, part, last):
        ac = 8 + 12*(u%2); pk = 76 if u == 1 else 40; d = ac + 4*part
        e(f"v_add_f32 v{d}, v{d}, v{d+1}\nv_add_f32 v{d+2}, v{d+2}, v{d+3}"); cvt(e, pk+part, d, d+2)
        if last: e(f"buffer_store_dwordx4 {v(pk,4)}, v{vP}, {s(WS,4)}, s{60+u} offen {st}")
    def pload():
        for i in range(4): e(f"buffer_load_dwordx4 {v(44+4*i,4)}, v{vL}, {s(WS,4)}, s59 offen offset:{1024*i} sc1")
    order = [[0,1,2],[4,5,3],[8,6,7]]; wo = [('O', t, t2) for u in range(3) for t2 in range(2) for t in order[u]]
    wl = [k for k in wo if k in LOP]; bufs = [44, 52, 32, 60]
    for p, k in enumerate(wo):
        u = p//6
        lg.wait(f"o{k[2]}", k)
        sm(8+12*(u%2)+4*(k[1]%3), 68+4*k[2], v(bufs[wl.index(k)%4],8) if k in LOP else wop(k))
        if k in LOP and u < 2: rdw(wl[wl.index(k)+4], bufs[wl.index(k)%4])
        if u > 0 and 1 <= p%6 <= 3: pack(u-1, order[u-1][p%6-1]%3, p%6 == 3)
        if u == 1 and p%6 >= 4: zero(14-6*(p%6-4), 6)
    if w < 3: e(f"v_and_b32 v7, 0xff, v{vL}"); lg.op("ds_read_b128 v[60:63], v7 offset:7168", 'sel')
    early = w < cfg['early1']
    if early: pload()
    for i in range(3): pack(2, order[2][i]%3, i == 2)
    tick(5)
    e("s_add_u32 s43, s43, 32\ns_add_u32 s37, s37, 1\ns_add_u32 s38, s38, 16384\ns_add_u32 s42, s42, 4096")
    if w < 3:
        l, d = e.uid("pc"), e.uid("pd")
        if not early:
            if w >= cfg['wait1']: e("s_waitcnt vmcnt(0)")
            tick(10)
            pload()
        lg.all()
        e(f"s_mov_b32 s29, 0\ns_waitcnt vmcnt({1 if early else 0})"); tick(13); e(f"{l}:")
        mfma(e, v(64,4), v(44,4), v(60,4), "0"); e("v_min3_u32 v76, v47, v51, v55")
        mfma(e, v(64,4), v(48,4), v(60,4)); e("v_min_u32 v76, v76, v59")
        mfma(e, v(64,4), v(52,4), v(60,4)); e("v_cmp_ne_u32 vcc, s31, v76")
        mfma(e, v(64,4), v(56,4), v(60,4))
        e(f"s_cbranch_vccz {d}\ns_add_u32 s29, s29, 1\ns_add_u32 s91, s91, 1"); pload()
        e(f"s_waitcnt vmcnt(0)\ns_cmp_lt_u32 s29, s{sDead}\ns_cbranch_scc1 {l}\ns_mov_b32 s{sDead}, 0\n{d}:")
        tick(6)
        zero(QA, 16)
        e(f"""v_permlane32_swap_b32 v64, v66
v_permlane32_swap_b32 v65, v67
v_add_f32 v64, v64, v66
v_add_f32 v65, v65, v67
v_cvt_pk_bf16_f32 v76, v64, v65
s_mov_b64 exec, s[46:47]
buffer_store_dword v76, v{vM}, {s(WS,4)}, s57 offen {st}
s_mov_b64 exec, -1""")
        rdw(('Q',3*G[0],0), SA)
    else:
        e(f"s_waitcnt vmcnt({4 if cfg.get('nofar') else 8})"); vmout()
        e(f"s_cmp_ge_u32 s37, 63\ns_cbranch_scc1 {N}_kv\nv_cmp_eq_u32 vcc, 0, v{vM}\ns_cbranch_vccz {N}_kv\ns_lshl_b32 s41, s43, 2\ns_add_u32 s41, s41, 128\nv_mov_b32 v76, 0"); wait_flags(e, 76, "s41", 77, sleep=1)
        e.lab(N + "_kv"); tick(6); prep()
    rot = f"s_mov_b32 s{sT}, s56\ns_mov_b32 s56, s57\ns_mov_b32 s57, s58\ns_mov_b32 s58, s{sT}"
    e(rot + "\ns_add_u32 s31, s31, 1")
    if w < 3:
        if w >= cfg['wait2']: e("s_waitcnt vmcnt(0)")
        gload()
    if cfg['stamp'] and w == cfg.get('tw', 0) and cfg.get('ticks'):
        tk = cfg['ticks']; tick(7); e(f"s_waitcnt lgkmcnt(0)\ns_cmp_lt_u32 s37, 9\ns_cbranch_scc1 {N}_step\ns_cmp_ge_u32 s37, 59\ns_cbranch_scc1 {N}_step")
        for i in range(len(tk)-1): e(f"s_sub_u32 s{sT}, s{tr(tk[i+1])}, s{tr(tk[i])}\ns_add_u32 s{84+i}, s{84+i}, s{sT}")
    e(f"s_branch {N}_step")
    e.lab(N + "_end")
    e("s_waitcnt lgkmcnt(0)" + (" vmcnt(0)" if w < 3 else "") + "\ns_barrier")
    if w == 3:
        e("s_waitcnt vmcnt(5)"); vmout(); e(f"s_lshl_b32 s41, s43, 2\ns_add_u32 s41, s41, {F_M}\ns_waitcnt vmcnt(0)\nv_mov_b32 v76, 1\ns_mov_b64 exec, 1")
        e(f"buffer_store_dword v76, off, {s(WS,4)}, s41 sc1\ns_mov_b64 exec, -1")
    e("s_waitcnt vmcnt(0)\ns_barrier")
    if cfg['stamp']:
        e("s_lshl_b32 s92, s36, 2\ns_add_u32 s92, s92, 4"); stamp(e, "s92", 1)
    e(rot + f"\ns_add_u32 s36, s36, 1\ns_cmp_lt_u32 s36, {cfg['layers']}\ns_cbranch_scc1 {N}_layer")
    if cfg['stamp']:
        for i in range(8): e(f"v_mov_b32 v{8+i}, s{84+i}")
        e(f"s_lshl_b32 s97, s2, 10\ns_add_u32 s97, s97, {STAMP+64+32*w}\ns_mov_b64 exec, 1\nbuffer_store_dwordx4 v[8:11], off, {s(WS,4)}, s97\nbuffer_store_dwordx4 v[12:15], off, {s(WS,4)}, s97 offset:16")
    e("s_branch END")
```

```python
from gen_common import *
from gen_a import addr48, units48
SC = "0x3e0293ee"
def unit32(va, so, sr, dstep, dst, vtr):
    return ([(va, so, sr), (va, so + dstep, sr)], [(dst(t, hi), vtr, t * 32 + hi * 256) for t in range(2) for hi in range(2) if dst(t, hi)])
def m16(e, d, a, b, c=None): e(f"v_mfma_f32_16x16x16_bf16 {d}, {a}, {b}, {d if c is None else c}")
def softmax(e, vals, m, t):
    e(f"v_max3_f32 v{m}, v{vals[0]}, v{vals[1]}, v{vals[2]}")
    r = vals[3:]
    while len(r) >= 2: e(f"v_max3_f32 v{m}, v{m}, v{r[0]}, v{r[1]}"); r = r[2:]
    if r: e(f"v_max_f32 v{m}, v{m}, v{r[0]}")
    xlane(e, "v_max_f32", m, t)
    e(f"v_mul_f32 v{m}, s30, v{m}")
    for x in vals: e(f"v_fma_f32 v{x}, v{x}, s30, -v{m}")
    for x in vals: e(f"v_exp_f32 v{x}, v{x}")
def role_p3(e, cfg):
    NS = cfg['ns3']
    W = lambda m, ks, t: wreg(((m * 18 + ks) * 2 + t) * 4, 80)
    e.lab("P3")
    e("s_barrier")
    srd(e, WT, 48, 576 * 8192); srd(e, XS, 56, 576 * 8192); srd(e, OUT, 40, 576 * 8192)
    e(f"""s_mul_i32 s{sLds}, s{sW}, 40960
s_lshl_b32 s{sT2}, s52, 8
s_lshl_b32 s{sT}, s{sW}, 6
s_add_u32 s{sT2}, s{sT2}, s{sT}
v_lshrrev_b32 v50, 2, v0
v_and_b32 v51, 3, v0
v_lshlrev_b32 v50, 13, v50
v_lshl_add_u32 v50, v51, 4, v50
v_add_u32 v56, s{sT2}, v50""")
    tr_addr(e, 61, 64, 50, 0)
    load_units(e, [unit32(56, ks * 32 * 8192, sr, 16 * 8192, lambda t, hi: wreg(((m * 18 + ks) * 2 + t) * 4 + 2 * hi, 80, 2), 61)
                   for m, sr in enumerate((WT, XS, OUT)) for ks in range(18)], 20480)
    ln_consts(e, 2, 3, 0, 4)
    e("v_and_b32 v50, 15, v0\nv_lshrrev_b32 v51, 4, v0\nv_lshlrev_b32 v51, 2, v51\nv_sub_u32 v50, v50, v51")
    for i in range(4): e(f"v_cmp_le_i32 {s(44+2*i,2)}, {i}, v50")
    e(f"v_min_u32 v4, 2, v0\nv_lshlrev_b32 v4, 2, v4\nv_mov_b32 v5, 0\ns_mov_b32 s30, {SC}\ns_mov_b32 s36, 0\ns_barrier")
    e("v_bfe_u32 v50, v0, 2, 2\nv_bfe_u32 v51, v0, 4, 1\nv_lshl_add_u32 v50, v50, 1, v51\nv_and_b32 v51, 1, v0\nv_lshl_add_u32 v50, v50, 1, v51\nv_lshlrev_b32 v50, 4, v50\nv_lshrrev_b32 v51, 5, v0\nv_lshl_add_u32 v0, v51, 8, v50")
    stamp(e, 0, cfg['stamp'])
    e.lab("P3_layer")
    e(f"s_mov_b32 s37, s53\ns_mov_b32 s38, 36864\ns_mov_b32 s39, {36864+24576}")
    e.lab("P3_loop")
    e("s_cmp_ge_u32 s37, 64\ns_cbranch_scc1 P3_att")
    e(f"s_lshl_b32 s40, s36, 6\ns_add_u32 s40, s40, s37\ns_lshl_b32 s41, s40, 7\ns_add_u32 s41, s41, {F_X1}"); wait_flags(e, 4, "s41", 50)
    e(f"s_mul_i32 s41, s40, 36864\ns_add_u32 s41, s41, {X1}"); ln_load(e, 8, 2, WS, "s41")
    ln_math(e, 8, 44)
    e("s_barrier"); ln_write(e, 8, 3); e("s_waitcnt lgkmcnt(0)\ns_barrier")
    K, V = 8, 24
    def body(ks, x):
        c = "0" if ks == 0 else None
        for mt in range(2):
            for t in range(2):
                mfma(e, v(K + 8 * mt + 4 * t, 4), W(0, ks, t), x[mt], c); mfma(e, v(V + 8 * t + 4 * mt, 4), x[mt], W(1, ks, t), c)
    gemm_x(e, 1, 60, body)
    e(f"""s_lshl_b32 s40, s40, 5
s_add_u32 s40, s40, s52
s_lshl_b32 s41, s36, 5
s_add_u32 s41, s41, s52
s_lshl_b32 s41, s41, 6
s_add_u32 s41, s41, s37
s_lshl_b32 s41, s41, 14
s_add_u32 s41, s41, {KX}
s_lshl_b32 s{sT}, s{sW}, 10
s_add_u32 s41, s41, s{sT}
s_add_u32 s42, s41, 4096
s_add_u32 s43, s41, s{sT}
s_add_u32 s43, s43, 8192
s_add_u32 s{sT2}, s{sT}, s38
v_add_u32 v6, s{sT2}, v1
v_add_u32 v76, s{sT}, v6""")
    for mt in range(2):
        for i in range(4): cvt(e, 40 + 4 * mt + i, K + 8 * mt + i, K + 8 * mt + 4 + i)
        e(f"buffer_store_dwordx4 {v(40+4*mt,4)}, v1, {s(WS,4)}, s{41+mt} offen sc1\nds_write_b128 v6, {v(40+4*mt,4)} offset:{4096*mt}")
    for t in range(2):
        for i in range(4): cvt(e, 48 + 4 * t + i, V + 8 * t + 2 * i, V + 8 * t + 2 * i + 1)
        e(f"buffer_store_dwordx4 {v(48+4*t,4)}, v1, {s(WS,4)}, s43 offen offset:{1024*t} sc1\nds_write_b128 v76, {v(48+4*t,4)} offset:{16384+1024*t}")
    e(f"s_lshl_b32 s41, s40, 2\ns_waitcnt lgkmcnt(0)")
    def bodyq(ks, x):
        if ks == 9: signal(e, "s41", 56)
        for mt in range(2):
            for t in range(2): mfma(e, v(K + 8 * mt + 4 * t, 4), W(2, ks, t), x[mt], "0" if ks == 0 else None)
    gemm_x(e, 1, 60, bodyq)
    for mt in range(2):
        for i in range(4): cvt(e, 40 + 4 * mt + i, K + 8 * mt + i, K + 8 * mt + 4 + i)
        e(f"ds_write_b128 v6, {v(40+4*mt,4)} offset:{8192+4096*mt}")
    e("s_waitcnt lgkmcnt(0)")
    e.lab("P3_att")
    e(f"s_cmp_lt_u32 s37, {NS}\ns_cbranch_scc1 P3_next\ns_barrier\nv_add_u32 v6, s39, v1\ns_lshl_b32 s{sT}, s{sW}, 11\nv_add_u32 v76, s{sT}, v6")
    Q, S = 8, 56
    for i in range(8): e(f"ds_read_b128 {v(Q+4*i,4)}, v6 offset:{8192+1024*i}")
    for kt in range(2):
        for ks in range(4): e(f"ds_read_b128 {v(40+4*ks,4)}, v6 offset:{4096*kt+1024*ks}")
        e("s_waitcnt lgkmcnt(0)")
        for ks in range(4):
            c = "0" if ks == 0 else None
            if kt == 0: mfma(e, v(S, 4), v(40 + 4 * ks, 4), v(Q + 4 * ks, 4), c)
            mfma(e, v(S + 4 + 4 * kt, 4), v(40 + 4 * ks, 4), v(Q + 16 + 4 * ks, 4), c)
    e(f"""s_lshl_b32 s40, s36, 6
s_add_u32 s40, s40, s37
s_sub_u32 s40, s40, {NS}
s_lshl_b32 s43, s40, 5
s_add_u32 s43, s43, s52
s_lshl_b32 s41, s36, 5
s_add_u32 s41, s41, s52
s_lshl_b32 s41, s41, 6
s_add_u32 s41, s41, s37
s_lshl_b32 s42, s41, 2
s_add_u32 s42, s42, {F_M-4*NS}"""); wait_flags(e, 5, "s42", 77, sleep=cfg['sl3'])
    e(f"""s_lshl_b32 s41, s41, 12
s_add_u32 s41, s41, {KM-4096*NS}
s_lshl_b32 s42, s{sW}, 9
s_add_u32 s42, s42, s41
v_lshrrev_b32 v77, 1, v1""")
    for ks in range(4): e(f"buffer_load_dwordx4 {v(40+4*ks,4)}, v0, {s(WS,4)}, s41 offen offset:{512*ks} sc1")
    e(f"buffer_load_dwordx2 v[78:79], v77, {s(WS,4)}, s42 offen offset:2048 sc1\nv_mov_b32 v77, 0xff800000")
    for i in range(4): e(f"v_cndmask_b32 v{S+i}, v77, v{S+i}, {s(44+2*i,2)}\nv_cndmask_b32 v{S+8+i}, v77, v{S+8+i}, {s(44+2*i,2)}")
    for ks in range(4):
        e(f"s_waitcnt vmcnt({4-ks})")
        for mt in range(2): mfma(e, v(S + 12 + 4 * mt, 4), v(40 + 4 * ks, 4), v(Q + 16 * mt + 4 * ks, 4), "0" if ks == 0 else None)
    e("ds_read_b128 v[8:11], v76 offset:16384\nds_read_b128 v[12:15], v76 offset:17408")
    for i in range(4): e(f"v_mov_b32 v{16+i}, 0x3f803f80")
    for r in (22, 23, 29, 30, 33, 34): e(f"v_mov_b32 v{r}, 0")
    softmax(e, [S, S + 1, S + 2, S + 3, S + 12, S + 13], 36, 37)
    softmax(e, list(range(S + 4, S + 12)) + [S + 16, S + 17], 36, 37)
    cvt(e, 20, S, S + 1); cvt(e, 21, S + 2, S + 3)
    for i in range(4): cvt(e, 24 + i, S + 4 + 2 * i, S + 5 + 2 * i)
    for mt in range(2): cvt(e, 28 + 4 * mt, S + 12 + 4 * mt, S + 13 + 4 * mt); cvt(e, 31 + 4 * mt, S + 12 + 4 * mt, S + 13 + 4 * mt)
    e("s_waitcnt vmcnt(0) lgkmcnt(0)")
    for mt in range(2): m16(e, v(56 + 4 * mt, 4), v(16, 2), v(28 + 4 * mt, 2), "0")
    for mt in range(2):
        for t in range(2): m16(e, v(40 + 8 * mt + 4 * t, 4), v(78, 2), v(28 + 4 * mt + 2 * t, 2), "0")
    for mt in range(2): mfma(e, v(56 + 4 * mt, 4), v(16, 4), v(20 + 4 * mt, 4))
    for mt in range(2):
        for t in range(2): mfma(e, v(40 + 8 * mt + 4 * t, 4), v(8 + 4 * t, 4), v(20 + 4 * mt, 4))
    e(f"""v_rcp_f32 v56, v56
v_rcp_f32 v60, v60
s_lshl_b32 s41, s40, 6
s_add_u32 s41, s41, s52
s_lshl_b32 s41, s41, 2
s_add_u32 s41, s41, s{sW}
s_lshl_b32 s41, s41, 10
s_add_u32 s41, s41, {OB}
s_add_u32 s42, s41, 0x20000""")
    for mt in range(2):
        for i in range(8): e(f"v_mul_f32 v{40+8*mt+i}, v{40+8*mt+i}, v{56+4*mt}")
        for i in range(4): cvt(e, 64 + 4 * mt + i, 40 + 8 * mt + 2 * i, 41 + 8 * mt + 2 * i)
        e(f"buffer_store_dwordx4 {v(64+4*mt,4)}, v1, {s(WS,4)}, s{41+mt} offen sc1")
    e(f"s_lshl_b32 s41, s43, 2\ns_add_u32 s41, s41, {F_O}"); signal(e, "s41", 77)
    e.lab("P3_next")
    e(f"""s_mov_b32 s{sT}, s38
s_mov_b32 s38, s39
s_mov_b32 s39, s{sT}
s_add_u32 s37, s37, {NS}
s_cmp_lt_u32 s37, {64+NS}
s_cbranch_scc1 P3_loop
s_add_u32 s36, s36, 1
s_cmp_lt_u32 s36, {cfg['layers']}
s_cbranch_scc1 P3_layer
s_branch END""")

def role_p4(e, cfg):
    NG = cfg['ng4']
    W = lambda ks, t: wreg((ks * 3 + t) * 4, 128)
    W2 = lambda ks, t, hi: wreg((ks * 3 + t) * 4 + 2 * hi, 128, 2)
    e.lab("P4")
    srd(e, WT, 64, 4096 * 1152); srd(e, OUT, 80, 2048 * 1152)
    e(f"s_mul_i32 s{sLds}, s{sW}, 40960\ns_mul_i32 s35, s33, 96\ns_mul_i32 s{sT}, s{sW}, {1024*1152}\ns_add_u32 s40, s35, s{sT}")
    addr48(e, 56, lambda: e("v_lshrrev_b32 v51, 2, v54\nv_lshlrev_b32 v51, 4, v51\nv_lshl_add_u32 v51, v53, 2, v51\nv_and_b32 v54, 3, v54\nv_add_u32 v51, v51, v54"), "s40")
    tr_addr(e, 61, 96, 50, 0)
    load_units(e, units48(e, lambda ks: 56, 32, W2, lambda ks: 32 * ks * 1152), 18432)
    e("v_mov_b32 v4, 128"); wait_flags(e, 4, 0, 5, DB)
    e(f"""v_and_b32 v50, 15, v0
v_lshrrev_b32 v51, 4, v0
v_mul_u32_u24 v2, 1152, v50
v_lshl_add_u32 v2, v51, 3, v2
s_min_u32 s{sT}, s{sW}, 2
s_lshl_b32 s{sT2}, s{sT}, 5
s_add_u32 s35, s35, s{sT2}
v_add_u32 v2, s35, v2
s_lshl_b32 s{sT}, s{sT}, 10
v_add_u32 v5, s{sT}, v1
s_mul_i32 s{sT}, s{sW}, 3072
v_add_u32 v3, s{sT}, v1
v_and_b32 v4, 7, v0
s_lshl_b32 s{sT}, s{sW}, 3
v_add_lshl_u32 v4, v4, s{sT}, 2
s_mov_b32 s36, 0
s_barrier""")
    NF = 24; AC = 104
    e.lab("P4_layer"); e("s_mov_b32 s37, s32"); e.lab("P4_unit")
    e(f"s_lshl_b32 s40, s36, 7\ns_add_u32 s40, s40, s37\ns_lshr_b32 s41, s40, 1\ns_lshl_b32 s41, s41, 7\ns_add_u32 s41, s41, {F_O}"); wait_flags(e, 4, "s41", 8, sleep=1)
    e(f"""s_mul_i32 s42, s40, 18432
s_add_u32 s42, s42, {X1}
buffer_load_dwordx2 v[116:117], v2, {s(WS,4)}, s42 offen sc1
s_lshl_b32 s41, s40, 2
s_add_u32 s41, s41, s{sW}
s_lshl_b32 s41, s41, 15
s_add_u32 s41, s41, {OB}""")
    def ld(ks):
        e(f"buffer_load_dwordx4 {v(8+4*(ks%NF),4)}, v1, {s(WS,4)}, s41 offen offset:{1024*(ks%4)} sc1")
        if ks % 4 == 3: e("s_add_u32 s41, s41, 4096")
    for ks in range(NF): ld(ks)
    for ks in range(32):
        e(f"s_waitcnt vmcnt({min(NF-1, 31-ks)})")
        for t in range(3): mfma(e, v(AC + 4 * t, 4), W(ks, t), v(8 + 4 * (ks % NF), 4), "0" if ks == 0 else None)
        if ks + NF < 32: ld(ks + NF)
    for t in range(3): e(f"ds_write_b128 v3, {v(AC+4*t,4)} offset:{1024*t}")
    e("s_waitcnt lgkmcnt(0)\ns_barrier")
    for w in range(4): e(f"ds_read_b128 {v(8+4*w,4)}, v5 offset:{3072*w}")
    e("s_waitcnt lgkmcnt(0)")
    for i in range(4): e(f"v_add_f32 v{8+i}, v{8+i}, v{12+i}\nv_add_f32 v{16+i}, v{16+i}, v{20+i}")
    for i in range(4): e(f"v_add_f32 v{8+i}, v{8+i}, v{16+i}")
    resid_out(e, 8, 116, 24)
    e(f"""s_mul_i32 s42, s37, 18432
s_cmp_eq_u32 s36, {cfg['layers']-1}
s_cbranch_scc1 P4_out
s_add_u32 s42, s42, {X2}
s_cmp_eq_u32 s{sW}, 3
s_cbranch_scc1 P4_s1
buffer_store_dwordx2 v[116:117], v2, {s(WS,4)}, s42 offen sc1
P4_s1:
s_lshr_b32 s41, s37, 1
s_lshl_b32 s41, s41, 5
s_and_b32 s{sT}, s37, 1
s_mul_i32 s{sT}, s{sT}, 12
s_add_u32 s41, s41, s{sT}
s_add_u32 s41, s41, s33
s_lshl_b32 s41, s41, 2
s_add_u32 s41, s41, {F_X2}"""); signal(e, "s41", 8)
    e(f"""s_branch P4_next
P4_out:
s_cmp_eq_u32 s{sW}, 3
s_cbranch_scc1 P4_s2
buffer_store_dwordx2 v[116:117], v2, {s(OUT,4)}, s42 offen
P4_s2:
s_barrier
P4_next:
s_add_u32 s37, s37, {NG}
s_cmp_lt_u32 s37, 128
s_cbranch_scc1 P4_unit
s_add_u32 s36, s36, 1
s_cmp_lt_u32 s36, {cfg['layers']}
s_cbranch_scc1 P4_layer""")
    stamp(e, 4, cfg['stamp'])
    e("s_branch END")
```

```python
from gen_common import *
from gen_b import unit32, m16, SC
LPAIR = [('Q',0),('Q',3),('Q',6),('K',1)]
OPAIR = [(0,0),(0,1),(4,0),(4,1),(6,1)]
LOP = {}
for i, (m, t) in enumerate(LPAIR): LOP[(m,t,0)] = 2*i; LOP[(m,t,1)] = 2*i+1
for i, (t, t2) in enumerate(OPAIR): LOP[('O',t,t2)] = 8+2*i; LOP[('O',t+1,t2)] = 9+2*i
ROP = {}
for m in 'QKVO':
    for t in range(9):
        for x in range(2):
            if (m,t,x) not in LOP: ROP[(m,t,x)] = len(ROP)
assert len(ROP) == 54
vL, vI, vP, vM, vX, vO, vW = 1, 0, 2, 3, 4, 5, 6
A0, QA, KA, SA, SB = 8, 44, 52, 60, 68
STG = [[0, 1024, 2048], [3072, 4096, 5120], [6144, 7168]]
class Lg:
    def __init__(s_, e): s_.e = e; s_.q = []
    def op(s_, txt, tag): s_.e(txt); s_.q.append(tag)
    def wait(s_, *tags):
        idx = [i for i, t in enumerate(s_.q) if t in tags]
        if not idx: return
        n = len(s_.q) - 1 - max(idx); s_.e(f"s_waitcnt lgkmcnt({n})"); s_.q = s_.q[max(idx)+1:]
    def all(s_): s_.e("s_waitcnt lgkmcnt(0)"); s_.q = []
def chain_setup(e, cfg):
    e.lab("CH")
    e(f"""s_setprio 3
s_getreg_b32 s54, hwreg(HW_REG_XCC_ID, 0, 4)
s_add_u32 s54, s54, 1
s_mul_i32 s{sLds}, s{sW}, 36864
s_add_u32 s{sLds}, s{sLds}, 16384
v_add_u32 v{vW}, s{sLds}, v1
s_lshl_b32 s{sT}, s{sW}, 3
v_lshrrev_b32 v50, 3, v0
v_add_u32 v50, s{sT}, v50
v_mul_u32_u24 v50, {cfg['ps']}, v50
v_add_lshl_u32 v50, v50, s52, 7
v_and_b32 v51, 7, v0
v_lshl_add_u32 v{vP}, v51, 4, v50
s_mul_i32 s59, s52, {cfg['ps']*128}
s_lshl_b32 s{sT}, s{sW}, 12
s_add_u32 s59, s59, s{sT}
s_add_u32 s59, s59, {PART}
s_mov_b32 s60, {PART}
s_mov_b32 s61, {PART+4096}
s_mov_b32 s62, {PART+8192}
v_and_b32 v50, 15, v0
v_cmp_gt_u32 s[46:47], 6, v50
v_lshrrev_b32 v51, 1, v50
s_mul_i32 s63, s{sW}, 3072
v_lshl_add_u32 v{vM}, v51, 10, s63
v_and_b32 v51, 1, v0
v_lshl_add_u32 v{vM}, v51, 4, v{vM}
s_lshr_b32 s{sT}, s52, 1
s_lshl_b32 s{sT}, s{sT}, 6
s_and_b32 s{sT2}, s52, 1
s_lshl_b32 s{sT2}, s{sT2}, 5
s_add_u32 s{sT}, s{sT}, s{sT2}
v_add_u32 v{vM}, s{sT}, v{vM}
v_bfe_u32 v51, v0, 4, 1
v_lshl_add_u32 v{vM}, v51, 3, v{vM}
v_lshrrev_b32 v51, 5, v0
v_lshl_add_u32 v{vM}, v51, 2, v{vM}
s_mov_b32 s56, {RING}
s_mov_b32 s57, {RING+9216}
s_mov_b32 s58, {RING+18432}
v_mov_b64 v[8:9], 0
v_mov_b64 v[10:11], 0
v_mov_b32 v12, -1""")
    for u in range(3): e(f"buffer_store_dwordx4 v[8:11], v{vP}, {s(WS,4)}, s{60+u} offen sc1")
    e(f"s_cmp_eq_u32 s{sW}, 3\ns_cbranch_scc1 CH_np\ns_mov_b64 exec, s[46:47]")
    for u in range(3): e(f"buffer_store_dword v12, v{vM}, {s(WS,4)}, s{56+u} offen sc1")
    e("s_mov_b64 exec, -1\nCH_np:\ns_lshl_b32 s41, s52, 2"); signal(e, "s41", 50, DB, "s54")
    srd(e, WT, 40, 576*8192); srd(e, XS, 48, 576*8192); srd(e, OUT, 56, 576*8192); srd(e, 64, 64, 4096*1152); srd(e, 32, 32, 9216)
    e(f"""v_lshrrev_b32 v50, 4, v0
v_bfe_u32 v51, v0, 3, 1
v_bfe_u32 v52, v0, 2, 1
v_and_b32 v53, 3, v0
v_lshl_add_u32 v54, v50, 1, v52
v_lshl_add_u32 v54, v51, 3, v54
v_lshlrev_b32 v54, 13, v54
v_lshl_add_u32 v54, v53, 4, v54
s_lshl_b32 s{sT2}, s52, 8
s_lshl_b32 s{sT}, s{sW}, 6
s_add_u32 s{sT2}, s{sT2}, s{sT}
v_add_u32 v76, s{sT2}, v54
v_lshrrev_b32 v54, 1, v50
v_lshlrev_b32 v54, 4, v54
v_lshl_add_u32 v54, v51, 2, v54
v_and_b32 v50, 1, v50
v_lshl_add_u32 v54, v50, 1, v54
v_add_u32 v54, v54, v52
v_mul_u32_u24 v54, 1152, v54
v_and_b32 v50, 1, v53
v_lshl_add_u32 v54, v50, 4, v54
s_mul_i32 s{sT2}, s52, {128*1152}
s_lshl_b32 s{sT}, s{sW}, 5
s_add_u32 s{sT2}, s{sT2}, s{sT}
v_add_u32 v78, s{sT2}, v54
v_lshrrev_b32 v50, 1, v53
v_lshl_add_u32 v77, v50, 7, v78""")
    tr_addr(e, 79, 64, 50, 0)
    def unit(m, t, h, dst):
        if m == 'O': return unit32(77 if t < 8 else 78, h*32*1152 + t*128, 64, 8*1152, dst, 79)
        return unit32(76, (2*t+h)*32*8192, {'Q': WT, 'K': XS, 'V': OUT}[m], 16*8192, dst, 79)
    us = []
    for m in 'QKV':
        for t in range(9):
            if (m,t,0) in ROP:
                for h in range(2): us.append(unit(m, t, h, lambda tn, hi: wreg(ROP[(m,t,tn)]*8 + 4*h + 2*hi, 80, 2)))
    for t in range(0, 9, 2):
        for h in range(4):
            if ('O',t,h//2) in ROP: us.append(unit('O', t, h, lambda tn, hi: wreg(ROP[('O',t+tn,h//2)]*8 + 4*(h%2) + 2*hi, 80, 2) if t+tn < 9 else None))
    load_units(e, us, 18432)
    lp = [[unit(m, t, h, lambda tn, hi: v(8 + 8*tn + 4*h + 2*hi, 2)) for h in range(2)] for m, t in LPAIR]
    lp += [[unit('O', t, 2*t2+h, lambda tn, hi: v(8 + 8*tn + 4*h + 2*hi, 2)) for h in range(2)] for t, t2 in OPAIR]
    for p, pr in enumerate(lp):
        for h in range(2):
            for i, (va, so, sr) in enumerate(pr[h][0]):
                e(f"s_add_u32 m0, s{sLds}, {p*4096+h*2048+i*1024}\ns_mov_b32 s{sT}, {so}\nbuffer_load_dwordx4 v{va}, {s(sr,4)}, s{sT} offen lds")
    for p, pr in enumerate(lp):
        e(f"s_waitcnt vmcnt({4*(8-p)})")
        for h in range(2):
            for dst, va, imm in pr[h][1]: e(f"ds_read_b64_tr_b16 {dst}, v{va} offset:{p*4096+h*2048+imm}")
        e("s_waitcnt lgkmcnt(0)")
        for i in range(4): e(f"ds_write_b128 v{vW}, {v(8+4*i,4)} offset:{p*4096+i*1024}")
        e("s_waitcnt lgkmcnt(0)")
    e(f"""v_and_b32 v50, 15, v0
s_mov_b32 s55, 0x3f80
v_lshrrev_b32 v51, 2, v50
v_lshrrev_b32 v52, 4, v0
v_and_b32 v53, 3, v0
v_lshlrev_b32 v{vX}, 8, v51
v_lshl_add_u32 v{vX}, v52, 6, v{vX}
v_lshl_add_u32 v{vX}, v53, 2, v{vX}
s_lshl_b32 s{sT}, s{sW}, 10
s_add_u32 s{sT}, s{sT}, 3072
v_add_u32 v{vX}, s{sT}, v{vX}
v_cmp_le_u32 s[44:45], 2, v53
v_and_b32 v53, 1, v0
v_lshlrev_b32 v51, 6, v51
v_lshl_add_u32 v51, v53, 4, v51
v_and_b32 v54, 1, v52
v_lshl_add_u32 v51, v54, 5, v51
v_lshrrev_b32 v54, 1, v52
v_lshl_add_u32 v51, v54, 8, v51
s_lshl_b32 s{sT}, s{sW}, 9
v_add_u32 v{vO}, s{sT}, v51
v_mov_b32 v55, 128"""); wait_flags(e, 55, 0, 56, DB)
    e("v_and_b32 v55, 31, v0\nv_lshlrev_b32 v55, 2, v55"); wait_flags(e, 55, 0, 56, DB)
    e(f"""v_cmp_ne_u32 vcc, s54, v56
v_mov_b32 v51, 0x4444
v_mov_b32 v52, 0xeeee
s_mov_b32 s30, {SC}
s_mov_b32 s31, 1
s_mov_b32 s36, 0
v_cndmask_b32 v{vI}, v51, v52, s[44:45]
s_waitcnt lgkmcnt(0)
s_barrier""")
    stamp(e, 0, cfg['stamp'])
    e("s_cbranch_vccnz CH_far")
    for md in "nf":
        if md == 'f': e.lab("CH_far")
        for w in range(3): e(f"s_cmp_eq_u32 s{sW}, {w}\ns_cbranch_scc1 CH{md}{w}_layer")
        e(f"s_branch CH{md}3_layer")

def chain_wave(e, cfg, md, w):
    N = f"CH{md}{w}"; st = "sc1" if md == 'f' else ""
    e.phys = 1; lg = Lg(e); G = [(w+i) % 3 for i in range(3)]
    def wop(k): return wreg(ROP[k]*8, 80, 8)
    def sm(d, a, b): e(f"v_smfmac_f32_16x16x64_bf16 {v(d,4)}, {v(a,4)}, {b}, v{vI}")
    def rdw(k, dst):
        for h in range(2): lg.op(f"ds_read_b128 {v(dst+4*h,4)}, v{vW} offset:{LOP[k]*2048+h*1024}", k)
    def rd(dst, off, tag): lg.op(f"ds_read_b128 {v(dst,4)}, v{vL} offset:{off}", tag)
    def zero(r0, n):
        for i in range(0, n, 2): e(f"v_mov_b64 {v(r0+i,2)}, 0")
    def gload():
        e(f"s_add_u32 s40, s56, s63")
        for i in range(3): e(f"buffer_load_dwordx4 {v(A0+12*w+4*i,4)}, v{vL}, {s(WS,4)}, s40 offen offset:{1024*i} sc1")
    def gcheck():
        l, d = e.uid("gc"), e.uid("gd"); b = A0 + 12*w; n = 3*cfg['dp2']; M = ["s[48:49]", "s[50:51]", "vcc"]
        e(f"s_mov_b32 s29, 0\ns_waitcnt vmcnt({n})"); tick(11); e(f"{l}:")
        for i in range(3): e(f"v_max3_u32 v{76+i}, v{b+4*i}, v{b+4*i+1}, v{b+4*i+2}")
        for i in range(3): e(f"v_max_u32 v{76+i}, v{76+i}, v{b+4*i+3}")
        for i in range(3): e(f"v_cmp_eq_u32 {M[i]}, -1, v{76+i}")
        e(f"s_or_b64 s[68:69], s[48:49], s[50:51]\ns_or_b64 s[68:69], s[68:69], vcc\ns_cbranch_scc0 {d}")
        for i in range(3): e(f"s_mov_b64 exec, {M[i]}\nbuffer_load_dwordx4 {v(b+4*i,4)}, v{vL}, {s(WS,4)}, s40 offen offset:{1024*i} sc1")
        e(f"s_mov_b64 exec, -1\ns_add_u32 s29, s29, 1\ns_add_u32 s90, s90, 1\ns_cmp_lt_u32 s29, s{sDead}\ns_waitcnt vmcnt({n})\ns_cbranch_scc1 {l}\ns_mov_b32 s{sDead}, 0\n{d}:")
        tick(12)
        for i in range(len(STG[w])): lg.op(f"ds_write_b128 v{vL}, {v(b+4*i,4)} offset:{STG[w][i]}", 'gw')
    def prep():
        zero(QA, 16); rdw(('Q',3*G[0],0), SA); rdw(('Q',3*G[0],1), SB)
    tr = lambda i: 70 + 2*cfg['ticks'].index(i)
    def tick(i):
        if cfg['stamp'] and w == cfg.get('tw', 0) and i in cfg.get('ticks', ()): e(f"s_memtime {s(tr(i),2)}")
    e.lab(N + "_layer")
    e(f"""s_mov_b32 s37, 0
s_lshl_b32 s43, s36, 11
s_add_u32 s43, s43, s52
s_lshl_b32 s42, s36, 5
s_add_u32 s42, s42, s52
s_lshl_b32 s38, s42, 20
s_add_u32 s38, s38, {KX+2048*w}
s_lshl_b32 s42, s42, 18
s_add_u32 s42, s42, {KM}""")
    def kdma():
        e(f"s_add_u32 s41, s38, {1024*w}\ns_mov_b32 m0, {8192+3072*w}")
        for i in range(len(STG[w])): e(f"buffer_load_dwordx4 v{vL}, {s(WS,4)}, s41 offen offset:{1024*i} sc1 lds")
    if w == 3: e(f"s_lshl_b32 s41, s43, 2\nv_and_b32 v76, 128, v{vL}"); wait_flags(e, 76, "s41", 77, sleep=1)
    e(f"v_bfe_u32 v76, v{vL}, 6, 2\nv_bfe_u32 v77, v{vL}, 4, 1\nv_lshl_add_u32 v76, v76, 1, v77\nv_mul_u32_u24 v76, 1152, v76\nv_bfe_u32 v77, v{vL}, 5, 1\nv_lshl_add_u32 v76, v77, 4, v76\nv_lshrrev_b32 v77, 8, v{vL}\nv_lshl_add_u32 v76, v77, 5, v76")
    for t in sorted(set(([3*w, 3*w+1, 3*w+2] if w < 3 else []) + [8])): e(f"buffer_load_dwordx4 {v(A0+4*t,4)}, v76, s[32:35], 0 offen offset:{128*t}")
    e("s_barrier")
    if w < 3: kdma(); e("s_add_u32 s40, s56, s63\ns_waitcnt vmcnt(0)")
    prep()
    e.lab(N + "_step")
    tick(0)
    if w < 3: gcheck()
    e("s_add_u32 s39, s56, 8192\ns_cmp_eq_u32 s37, 0")
    if w < 3: lg.all()
    e("s_barrier")
    tick(1)
    if cfg['stamp'] and w == 0 and cfg.get('steps'):
        e(f"s_lshl_b32 s92, s36, 6\ns_add_u32 s92, s92, s37\ns_lshl_b32 s92, s92, 2\ns_add_u32 s92, s92, 512"); stamp(e, "s92", 1)
    from collections import defaultdict
    pre, val = defaultdict(list), defaultdict(list)
    def slot(p):
        for f in pre.pop(p, []) + val.pop(p, []): e(f) if isinstance(f, str) else f()
    def rh(k, dst, h): return lambda: lg.op(f"ds_read_b128 {v(dst+4*h,4)}, v{vW} offset:{LOP[k]*2048+h*1024}", k)
    pka = lambda d: f"v_pk_add_f32 {v(d,2)}, {v(d,2)}, {v(d+2,2)}"
    ad = lambda d: f"v_add_f32 v{d}, v{d}, v{d+2}"
    cv = lambda d, a, b: f"v_cvt_pk_bf16_f32 v{d}, v{a}, v{b}"
    z = lambda r: f"v_mov_b64 {v(r,2)}, 0"
    stg = [('Q',3*g,x) for g in G for x in range(2)] + [('K',1,0), ('K',1,1)]
    pos, sb = [0, 1, 7, 12, 17, 22, 27, 32], [SA, SB] + [SA]*6
    ok = lambda ts, ms: [(m,t,x) for t in ts for m in ms for x in range(2) if (m,t,x) not in LOP]
    T = [3*g+i for g in G for i in range(3)]
    if w != 2: T.remove(8); T.append(8)
    rest = ok(T[:3], 'QK') + ok(T[3:], 'Q') + ok(T[3:], 'K')
    seq = [stg[pos.index(p)] if p in pos else rest.pop(0) for p in range(36)] + [('V',t,x) for t in range(9) for x in range(2)]
    ra = lambda t: (lambda: rd(A0+4*t, STG[t//3][t%3], f"A{t}"))
    if w == 3:
        for t in range(3): ra(t)()
    if w != 2: e(f"{'s_cmp_eq_u32 s37, 0' if cfg.get('steps') else ''}\ns_cbranch_scc1 {N}_n8\nbuffer_load_dwordx4 {v(A0+32,4)}, v{vL}, {s(WS,4)}, s39 offen sc1\n{N}_n8:")
    tl = [t for t in T[3:] if t < 8]
    for i, f in enumerate([rh(stg[2], SA, 0), rh(stg[2], SA, 1)] + [ra(t) for t in tl]): pre[i if i < 7 else 8].append(f)
    for i in range(3, 8): pre[pos[i-1]] += [rh(stg[i], SA, 0), rh(stg[i], SA, 1)]
    pb = cfg['pb'] if w < 3 else cfg['pb3']
    pre[pb].append(lambda: (tick(8), lg.wait(f"A{tl[-1]}"), e("s_barrier"), tick(9)))
    pre[0].insert(0, "s_add_u32 s41, s38, 8192")
    for i in range(2): pre[2+i].append(f"buffer_load_dwordx4 {v(SB+4*i,4)}, v{vL}, {s(WS,4)}, s41 offen offset:{1024*i} sc1")
    p8 = seq.index(('Q',8,0)) - 1 if w != 2 else 20
    pre[p8].append(f"s_waitcnt vmcnt({0 if w == 2 else 1})"); assert cfg['pw'] < p8 < 23
    if w < 3: val[18].append("v_mov_b32 v76, -1"); pre[23].append(f"s_mov_b64 exec, s[46:47]\nbuffer_store_dword v76, v{vM}, {s(WS,4)}, s58 offen {st}\ns_mov_b64 exec, -1")
    if w < 2:
        pre[8].append("s_cmp_lt_u32 s37, 63\ns_cselect_b32 s40, 16384, 0\ns_add_u32 s40, s40, s38"); val[4].append(f"v_lshlrev_b32 v7, 3, v{vL}")
        pre[cfg['pw']].append(("s_add_u32 s40, s40, 6144\n" if w else "") + f"buffer_load_dword v7, v7, {s(WS,4)}, s40 offen sc1")
    if w == 3: pre[8].append(f"s_lshl_b32 s41, s43, 2\nbuffer_load_dword v{vM}, off, {s(WS,4)}, s41 offset:256 sc1")
    for p, x in zip((24, 25, 27, 28, 29, 30), [ad(QA), ad(QA+4), ad(QA+1), ad(QA+5), cv(78, QA, QA+4), cv(79, QA+1, QA+5)]): val[p].append(x)
    pre[33].append(lambda: lg.op(f"ds_write2_b32 v{vX}, v78, v79 offset0:8 offset1:12", 'q'))
    for i in range(4): val[min(33+i, 35)].append(z(SA+2*i))
    val[36] += [ad(KA), ad(KA+1)]; val[37] += [ad(KA+4), ad(KA+5)]; val[38] += [cv(76, KA, KA+4), cv(77, KA+1, KA+5)]
    pre[39].append(lambda: lg.op(f"ds_write2_b32 v{vX}, v76, v77 offset0:0 offset1:4", 'k')); pre[42].append("s_add_u32 s39, s42, 2048")
    b3 = cfg['b3']
    pre[b3].append(lambda: (lg.all(), e("s_barrier")))
    XR = [[8, 16, 20, 24], [12, 28, 32, 36]]; F = lambda i: v(QA+4*i, 4)
    rq = [(QA+4*i, 3072+1024*i, f"F{i}") for i in range(4)] + [(XR[kt][ks], 8192+4096*kt+1024*ks, f"x{kt}{ks}") for kt in range(2) for ks in range(4)]
    for i, r in enumerate(rq): pre[b3+i].append(lambda r=r: rd(*r))
    pre[52].insert(0, lambda: lg.wait("F3")); pre[57].append(lambda: lg.wait("x10"))
    if w == 3:
        pre[13].append(f"s_lshr_b32 s41, s42, 10\ns_sub_u32 s41, s41, {(KM>>10)-F_M+4}"); pre[14].append("s_cmp_lg_u32 s37, 0\ns_cselect_b64 s[48:49], 1, 0")
        pre[cfg['pf']].append(f"s_mov_b64 exec, s[48:49]\nbuffer_store_dword v{vI}, off, {s(WS,4)}, s41 sc1\ns_mov_b64 exec, -1")
    for p, k in enumerate(seq):
        m, t, tn = k
        lg.wait(f"A{t}", k)
        sm({'Q': QA, 'K': KA, 'V': SA}[m] + 4*tn, A0+4*t, v(sb[stg.index(k)],8) if k in LOP else wop(k))
        if p < 53 and (pre[p] or val[p]): lg.wait(f"A{seq[p+1][1]}", seq[p+1])
        slot(p)
        if p == 35: tick(2)
    val[54].append(ad(SA)); val[55].append(ad(SA+1)); val[56] += [ad(SA+4), ad(SA+5)]; val[57] += [cv(42, SA, SA+1), cv(43, SA+4, SA+5)]; val[54].append(f"v_lshrrev_b32 v41, 1, v{vL}")
    if w >= cfg.get('nof', 0): pre[58+w].append(f"s_andn2_b64 exec, exec, s[44:45]\nbuffer_store_dwordx4 {F(w)}, v{vO}, {s(WS,4)}, s42 offen sc1\ns_mov_b64 exec, -1")
    if w >= cfg.get('nov', 0): pre[58+(w+2)%4].append(f"buffer_store_dwordx2 v[42:43], v41, {s(WS,4)}, s39 offen offset:{512*w} sc1")
    val[62] += ["v_mov_b32 v16, 0x3f803f80", "v_mov_b32 v17, v16"]; val[63] += ["v_mov_b64 v[18:19], v[16:17]", "v_max3_f32 v40, v76, v77, v8"]
    val[64] += ["v_max3_f32 v40, v40, v9, v10", "v_max_f32 v40, v40, v11"]; val[65] += ["v_mov_b32 v21, 0", "v_mov_b32 v22, 0"]
    wo = [('O', t, t2) for t in (0,1,2,3,4,5,8,6,7) for t2 in range(2)]; wl = [k for k in wo if k in LOP]; bufs = [44, 52, 32, 60]
    for h in range(2): pre[65].append(rh(wl[0], 44, h))
    assert all(p < 24 - (k[2] == 0) for p, k in enumerate(seq) if k[0] == 'Q')
    for i in range(12):
        kt, ks = i//4 - 1, i % 4
        mfma(e, v([8,12,76][kt],4), v(XR[kt][ks],4) if kt >= 0 else F(ks), F(ks), "0" if ks == 0 else None)
        lg.wait({2: "x03", 8: "x13"}.get(i)); slot(54+i)
    tick(3)
    e(f"s_cmp_eq_u32 s37, 63\ns_cbranch_scc1 {N}_end")
    e("v_max3_f32 v40, v40, v12, v13\nv_max3_f32 v41, v40, v14, v15\nv_max3_f32 v40, v40, v14, v15"); rdw(wl[1], bufs[1])
    e("v_permlane16_swap_b32 v40, v41\nv_max_f32 v40, v40, v41\nv_max_f32 v41, v40, v41"); rdw(wl[2], bufs[2])
    e("v_permlane32_swap_b32 v40, v41\nv_max_f32 v40, v40, v41\nv_mul_f32 v40, s30, v40")
    for x in (76, 8, 10, 12, 14): e(f"v_pk_fma_f32 {v(x,2)}, {v(x,2)}, s[30:31], v[40:41] op_sel_hi:[1,0,0] neg_lo:[0,0,1] neg_hi:[0,0,1]")
    e("v_exp_f32 v76, v76\nv_exp_f32 v77, v77\nv_exp_f32 v8, v8"); cvt(e, 20, 76, 77); cvt(e, 23, 76, 77)
    e("v_exp_f32 v9, v9\nv_exp_f32 v10, v10"); m16(e, v(28,4), v(16,2), v(20,2), "0")
    e("v_exp_f32 v11, v11"); m16(e, v(SA,4), v(42,2), v(20,2), "0")
    e("v_exp_f32 v12, v12"); m16(e, v(SA+4,4), v(42,2), v(22,2), "0")
    e("v_exp_f32 v13, v13\nv_exp_f32 v14, v14\nv_exp_f32 v15, v15")
    for i in range(4): cvt(e, 24+i, 8+2*i, 9+2*i)
    zero(8, 4)
    mfma(e, v(28,4), v(16,4), v(24,4)); zero(12, 4)
    mfma(e, v(SA,4), v(SB,4), v(24,4)); zero(20, 4)
    mfma(e, v(SA+4,4), v(SB+4,4), v(24,4)); e("v_rcp_f32 v40, v28"); zero(16, 4)
    for h in range(2):
        for i in (2*h, 2*h+1): e(f"v_pk_mul_f32 {v(SA+2*i,2)}, {v(SA+2*i,2)}, v[40:41] op_sel_hi:[1,0]" if h else f"v_mul_f32 v{SA+2*i}, v{SA+2*i}, v40\nv_mul_f32 v{SA+2*i+1}, v{SA+2*i+1}, v40")
        for i in (2*h, 2*h+1): cvt(e, 76+i, SA+2*i, SA+2*i+1)
    e("s_mov_b64 exec, s[44:45]"); lg.op(f"ds_write_b128 v{vO}, v[76:79]", 'o'); e("s_mov_b64 exec, -1")
    rdw(wl[3], 60); zero(24, 8); e("v_mov_b32 v43, s31")
    lg.wait('o'); e("s_barrier")
    tick(4)
    rd(68, 0, 'o0'); rd(72, 1024, 'o1'); e("v_mov_b32 v79, s31")
    acc = lambda t: 8 + 12*(t//3 % 2) + 4*(t % 3)
    for i in range(12): pre[max(i, wo.index(wl[i//2]))].append(rh(wl[4+i//2], bufs[i//2 % 4], i % 2))
    for j in range(9):
        t = wo[2*j][1]; u = t//3; pk = 76 if u == 1 else 40
        val[2*j+3] += [ad(acc(t)), ad(acc(t)+1)] if j < 8 else [pka(acc(t))]; val[2*j+4-(j % 3 == 2)].append(cv(pk + t % 3, acc(t), acc(t)+1))
        if j % 3 == 2: pre[2*j+4].append(f"buffer_store_dwordx4 {v(pk,4)}, v{vP}, {s(WS,4)}, s{60+u} offen {st}")
    for p, r in zip((8, 10, 6, 8, 12, 14), (16, 18, 8, 10, 12, 14)): val[p].append(z(r))
    if w < 3: val[20] += [f"v_and_b32 v33, 16, v{vL}\nv_bfe_u32 v32, v{vL}, 5, 3\nv_lshlrev_b32 v33, v33, s55\nv_mov_b32 v63, 0"] + [f"v_cmp_eq_u32 vcc, {j}, v32\nv_cndmask_b32 v{60+j}, 0, v33, vcc" for j in range(3)]
    pre[16].append("s_add_u32 s43, s43, 32\ns_add_u32 s37, s37, 1"); pre[17].append(f"s_add_u32 s38, s38, {0 if cfg.get('fix') else 16384}\ns_add_u32 s42, s42, 4096")
    for p, k in enumerate(wo):
        lg.wait(f"o{k[2]}", k)
        sm(acc(k[1]), 68+4*k[2], v(bufs[wl.index(k) % 4],8) if k in LOP else wop(k))
        if p < 17: lg.wait(f"o{wo[p+1][2]}", wo[p+1])
        slot(p)
    for p in range(18, 22): slot(p)
    assert not pre and not val
    def pload():
        for i in range(4): e(f"buffer_load_dwordx4 {v(44+4*i,4)}, v{vL}, {s(WS,4)}, s59 offen offset:{1024*i} sc1")
    early = False
    tick(5)
    if w < 3:
        l, d = e.uid("pc"), e.uid("pd")
        if not early:
            e(f"s_waitcnt vmcnt({cfg['w1'][w]})")
            tick(10)
            pload()
        lg.all()
        M = ["s[48:49]", "s[50:51]", "s[94:95]", "vcc"]
        e(f"s_mov_b32 s29, 0\n{l}:")
        for i in range(4):
            e(f"s_waitcnt vmcnt({3-i})"); mfma(e, v(64,4), v(44+4*i,4), v(60,4), None if i else "0"); e(f"v_cmp_ne_u32 {M[i]}, s31, v{47+4*i}")
            if i == 2: e("s_or_b64 s[68:69], s[48:49], s[50:51]")
        e(f"s_or_b64 s[68:69], s[68:69], s[94:95]\ns_or_b64 s[68:69], s[68:69], vcc\ns_cbranch_scc0 {d}")
        for i in range(4): e(f"s_mov_b64 exec, {M[i]}\nbuffer_load_dwordx4 {v(44+4*i,4)}, v{vL}, {s(WS,4)}, s59 offen offset:{1024*i} sc1")
        e(f"s_mov_b64 exec, -1\ns_add_u32 s29, s29, 1\ns_add_u32 s91, s91, 1\ns_cmp_lt_u32 s29, s{sDead}\ns_cbranch_scc1 {l}\ns_mov_b32 s{sDead}, 0\ns_waitcnt vmcnt(0)\n{d}:")
        tick(6)
        zero(QA, 16)
        e(f"""v_permlane32_swap_b32 v64, v66
v_permlane32_swap_b32 v65, v67
v_add_f32 v64, v64, v66
v_add_f32 v65, v65, v67
v_cvt_pk_bf16_f32 v76, v64, v65
s_mov_b64 exec, s[46:47]
buffer_store_dword v76, v{vM}, {s(WS,4)}, s57 offen {st}
s_mov_b64 exec, -1""")
        rdw(('Q',3*G[0],0), SA); rdw(('Q',3*G[0],1), SB)
    else:
        e("s_waitcnt vmcnt(5)"); tick(10)
        e(f"s_cmp_ge_u32 s37, 63\ns_cbranch_scc1 {N}_kv\nv_cmp_eq_u32 vcc, 0, v{vM}\ns_cbranch_vccz {N}_kv\ns_add_u32 s90, s90, 1\ns_lshl_b32 s41, s43, 2\ns_add_u32 s41, s41, 128\nv_mov_b32 v76, 0"); wait_flags(e, 76, "s41", 77, sleep=1)
        e.lab(N + "_kv"); tick(6); prep()
    rot = f"s_mov_b32 s{sT}, s56\ns_mov_b32 s56, s57\ns_mov_b32 s57, s58\ns_mov_b32 s58, s{sT}"
    e(rot + "\ns_add_u32 s31, s31, 1")
    if w < 3:
        kdma(); e(f"s_waitcnt vmcnt({len(STG[w])})")
        gload()
    if cfg['stamp'] and w == cfg.get('tw', 0) and cfg.get('ticks'):
        tk = cfg['ticks']; tick(7); e(f"s_waitcnt lgkmcnt(0)\ns_cmp_lt_u32 s37, 9\ns_cbranch_scc1 {N}_step\ns_cmp_ge_u32 s37, 59\ns_cbranch_scc1 {N}_step")
        for i in range(len(tk)-1): e(f"s_sub_u32 s{sT}, s{tr(tk[i+1])}, s{tr(tk[i])}\ns_add_u32 s{84+i}, s{84+i}, s{sT}")
    e(f"s_branch {N}_step")
    e.lab(N + "_end")
    e("s_waitcnt lgkmcnt(0)" + (" vmcnt(0)" if w < 3 else "") + "\ns_barrier")
    if w == 3:
        e(f"s_lshr_b32 s41, s42, 10\ns_sub_u32 s41, s41, {(KM>>10)-F_M}\ns_waitcnt vmcnt(0)\nv_mov_b32 v76, 1\ns_mov_b64 exec, 1")
        e(f"buffer_store_dword v76, off, {s(WS,4)}, s41 sc1\ns_mov_b64 exec, -1")
    e("s_waitcnt vmcnt(0)\ns_barrier")
    if cfg['stamp']:
        e("s_lshl_b32 s92, s36, 2\ns_add_u32 s92, s92, 4"); stamp(e, "s92", 1)
    e(rot + f"\ns_add_u32 s36, s36, 1\ns_cmp_lt_u32 s36, {cfg['layers']}\ns_cbranch_scc1 {N}_layer")
    if cfg['stamp']:
        for i in range(8): e(f"v_mov_b32 v{8+i}, s{84+i}")
        e(f"s_lshl_b32 s97, s2, 10\ns_add_u32 s97, s97, {STAMP+64+32*w}\ns_mov_b64 exec, 1\nbuffer_store_dwordx4 v[8:11], off, {s(WS,4)}, s97\nbuffer_store_dwordx4 v[12:15], off, {s(WS,4)}, s97 offset:16")
    e("s_branch END")
```

```python
from gen_common import *
def phi(e, x, t):
    e(f"""v_min_f32 v{t}, 0, v{x}
v_mul_f32 v{t}, 0x3fb8aa3b, v{t}
v_exp_f32 v{t}, v{t}
v_max_f32 v{x}, 0, v{x}
v_add_f32 v{x}, 0x358637bd, v{x}
v_add_f32 v{x}, v{x}, v{t}""")
def role_p1(e, cfg):
    NG, G0, N3 = cfg['ng1'], cfg['g1_first'], cfg['n1_l3']
    W = lambda ks, t: wreg((ks * 4 + t) * 4, 224)
    W2 = lambda ks, t, hi: wreg((ks * 4 + t) * 4 + 2 * hi, 224, 2)
    e.lab("P1")
    srd(e, WT, 8, 576 * 3456); srd(e, XS, 0, 2048 * 1152)
    e(f"s_mul_i32 s{sLds}, s{sW}, 48\ns_lshl_b32 s35, s33, 2\ns_add_u32 s35, s35, s{sW}\ns_mul_i32 s40, s33, 144\ns_mul_i32 s42, s{sW}, {8*3456}\ns_add_u32 s40, s40, s42\ns_mul_i32 s42, s{sW}, 5120")
    ln_consts(e, 2, 3, 0, 4)
    e(f"s_mul_i32 s41, s32,/*rows*/ 36864".replace("/*rows*/ ", ""))
    ln_load(e, 8, 2, XS, "s41", "")
    for d in range(5):
        e(f"v_add_u32 v50, {64*d}, v0"); divmod_v(e, 51, 52, 50, 40)
        e("v_min_u32 v52, 35, v52"); divmod_v(e, 53, 54, 52, 12); divmod_v(e, 55, 50, 54, 3)
        e(f"""v_mul_u32_u24 v51, 3456, v51
v_mul_u32_u24 v53, 1152, v53
v_mul_u32_u24 v55, 36, v55
v_lshl_add_u32 v53, v50, 4, v53
v_add3_u32 v53, v53, v55, s40
v_add_u32 v{56+d}, v51, v53""")
    tr_addr(e, 61, 640, 50, 0)
    e("v_and_b32 v50, 3, v0\nv_min_u32 v51, 2, v50\nv_mul_u32_u24 v51, 192, v51\nv_lshlrev_b32 v50, 3, v50\nv_sub_u32 v62, v61, v50\nv_add3_u32 v62, v62, v51, 32")
    e("v_add_u32 v64, 81920, v61\nv_add_u32 v65, 81920, v62")
    bat = [range(b, min(b+4, 18)) for b in range(0, 18, 4)]
    def issue(b):
        for ks in bat[b]:
            for d in range(5): e(f"s_add_u32 m0, s42, {(ks % 8)*20480 + d*1024}\ns_mov_b32 s{sT}, {ks*32*3456}\nbuffer_load_dwordx4 v{56+d}, {s(WT,4)}, s{sT} offen lds")
    issue(0); issue(1)
    for b in range(5):
        e(f"s_waitcnt vmcnt({5*len(bat[b+1]) if b < 4 else 0})\ns_barrier")
        for ks in bat[b]:
            for t in range(4):
                for hi in range(2): e(f"ds_read_b64_tr_b16 {W2(ks, t, hi)}, v{61 + 3*(b % 2) + (t == 3)} offset:{(ks % 4)*20480 + (t % 3)*192 + hi*2560}")
        e("s_waitcnt lgkmcnt(0)")
        if b < 3: e("s_barrier"); issue(b+2)
    e("v_mov_b32 v4, 128"); wait_flags(e, 4, 0, 5, DB)
    e(f"""v_and_b32 v50, 15, v0
v_lshrrev_b32 v51, 4, v0
v_cmp_gt_u32 s[44:45], 8, v50
v_cmp_eq_u32 s[46:47], 10, v50
v_cmp_gt_u32 s[48:49], 2, v50
v_cmp_eq_u32 s[50:51], 1, v51
s_lshl_b32 s{sT}, s{sW}, 7
s_add_u32 s{sT}, s{sT}, 40960
v_lshlrev_b32 v5, 4, v51
v_lshl_add_u32 v5, v50, 1, v5
v_add_u32 v5, s{sT}, v5
v_lshl_add_u32 v6, v50, 2, s{sT}
v_mul_u32_u24 v63, 12, v0
v_min_u32 v4, 23, v0
v_lshlrev_b32 v4, 8, v4
s_mov_b32 s36, 0
s_mov_b32 s37, s32
s_mov_b32 s38, {NG}
s_barrier""")
    KV = 112; Q, K, V, T = 64, 72, 80, 88
    lst(e, cfg, 0, 50); e.lab("P1_layer")
    for i in range(16): e(f"v_mov_b32 v{KV+i}, 0")
    e.lab("P1_seg")
    e("s_cmp_eq_u32 s36, 0\ns_cbranch_scc1 P1_have")
    e(f"s_lshl_b32 s41, s37, 2\ns_add_u32 s41, s41, {F_X2}"); wait_flags(e, 4, "s41", 50); lst(e, cfg, 1, 50)
    e(f"s_mul_i32 s41, s37, 36864\ns_add_u32 s41, s41, {X2}"); ln_load(e, 8, 2, WS, "s41")
    e.lab("P1_have")
    ln_math(e, 8, 44); ln_write(e, 8, 3)
    e("s_waitcnt lgkmcnt(0)\ns_barrier\ns_add_u32 s39, s37, s38\ns_cmp_lg_u32 s36, 0\ns_cbranch_scc1 P1_nopf\ns_cmp_ge_u32 s39, 64\ns_cbranch_scc1 P1_nopf\ns_mul_i32 s41, s39, 36864")
    ln_load(e, 8, 2, XS, "s41", "")
    e.lab("P1_nopf")
    def body(ks, x):
        c = "0" if ks == 0 else None
        for mt in range(2):
            mfma(e, v(Q + 4 * mt, 4), W(ks, 0), x[mt], c)
            for t, r in ((1, K), (2, V), (3, T)): mfma(e, v(r + 4 * mt, 4), x[mt], W(ks, t), c)
    gemm_x(e, 1, 96, body)
    e("s_barrier")
    for i in range(8):
        e(f"v_cndmask_b32 v{96+i}, v{T+i}, 1.0, s[46:47]"); phi(e, T + i, 44 + i % 2)
        e(f"v_cndmask_b32 v{T+i}, v{96+i}, v{T+i}, s[44:45]")
    for i in range(4): cvt(e, 96 + i, T + 2 * i, T + 2 * i + 1)
    e("s_mov_b64 exec, s[48:49]")
    for i in range(4): e(f"ds_write_b16 v5, v{96+i} offset:{(i//2)*64+(i%2)*8}\nds_write_b16_d16_hi v5, v{96+i} offset:{(i//2)*64+(i%2)*8+4}")
    e("s_mov_b64 exec, -1")
    for i in range(8): phi(e, K + i, 44 + i % 2)
    for i in range(4): cvt(e, 100 + i, K + 2 * i, K + 2 * i + 1); cvt(e, 104 + i, V + 2 * i, V + 2 * i + 1)
    e("s_waitcnt lgkmcnt(0)\nds_read_b32 v54, v6\nds_read_b32 v58, v6 offset:64")
    mfma(e, v(KV, 4), v(100, 4), v(104, 4)); mfma(e, v(KV + 4, 4), v(96, 4), v(104, 4))
    mfma(e, v(KV + 8, 4), v(100, 4), v(96, 4)); mfma(e, v(KV + 12, 4), v(96, 4), v(96, 4))
    for i in range(8): phi(e, Q + i, 44 + i % 2)
    for i in range(4): cvt(e, 52 + (i // 2) * 4 + i % 2, Q + 2 * i, Q + 2 * i + 1)
    e(f"""s_lshl_b32 s41, s37, 5
s_add_u32 s41, s41, s35
s_mul_i32 s41, s41, 1536
s_mul_i32 s{sT}, s36, {PQ_L}
s_add_u32 s41, s41, s{sT}
s_add_u32 s41, s41, {PQ}
s_waitcnt lgkmcnt(0)
buffer_store_dwordx3 v[52:54], v63, {s(WS,4)}, s41 offen sc1
buffer_store_dwordx3 v[56:58], v63, {s(WS,4)}, s41 offen offset:768 sc1
s_waitcnt vmcnt(2)
s_mov_b32 s37, s39
s_cmp_lt_u32 s37, 64
s_cbranch_scc1 P1_seg"""); lst(e, cfg, 2, 50)
    e(f"""s_mul_i32 s42, s36, {KVP_L}
s_lshl_b32 s{sT}, s35, 12
s_add_u32 s42, s42, s{sT}
s_add_u32 s42, s42, {KVP}
s_lshl_b32 s43, s36, 2
s_mul_i32 s{sT}, s33, {128*NG}
s_add_u32 s43, s43, s{sT}
s_add_u32 s43, s43, {F_PART}
s_cmp_eq_u32 s32, {NG-1}
s_cbranch_scc1 P1_fin
s_lshl_b32 s{sT}, s32, 17
s_add_u32 s41, s42, s{sT}""")
    for i in range(4): e(f"buffer_store_dwordx4 {v(KV+4*i,4)}, v1, {s(WS,4)}, s41 offen offset:{1024*i} sc1")
    e(f"s_lshl_b32 s{sT}, s32, 7\ns_add_u32 s41, s43, s{sT}"); signal(e, "s41", 50)
    e("s_cmp_eq_u32 s34, 1\ns_cbranch_scc1 P3\ns_cmp_eq_u32 s34, 0\ns_cbranch_scc1 P1_next\ns_mov_b32 s32, s52\ns_mov_b32 s33, s53\ns_barrier\ns_branch P4")
    e.lab("P1_fin")
    e(f"""s_cmp_eq_u32 s36, 0
s_cselect_b32 s40, 0, {G0}
v_max_u32 v50, s40, v0
v_min_u32 v50, {NG-2}, v50
v_lshlrev_b32 v50, 7, v50"""); wait_flags(e, 50, "s43", 51, sleep=1); lst(e, cfg, 3, 51)
    RB = [128, 144, 160, 176, 192, 208, 64, 80, 96, 8, 24]
    e("v_and_b32 v51, 15, v0\nv_subrev_u32 v51, 8, v51\nv_cmp_gt_u32 vcc, 3, v51\nv_or_b32 v44, 0x40000000, v1\nv_cndmask_b32 v45, v44, v1, s[50:51]\nv_cndmask_b32 v46, v44, v1, vcc\nv_or_b32 v47, v45, v46\nv_mov_b32 v44, v1")
    for NB in (11, 2):
        e.lab(f"P1_red{NB}")
        if NB > 2: e("s_cmp_lg_u32 s36, 0\ns_cbranch_scc1 P1_red2")
        for j in range(NB):
            e(f"s_add_u32 s{sT2}, s40, {j}\ns_lshl_b32 s{sT}, s{sT2}, 17\ns_add_u32 s41, s42, s{sT}\ns_cmp_lt_u32 s{sT2}, {NG-1}\ns_cselect_b32 s{sT}, 0, 0x40000000")
            for i in range(4): e(f"v_or_b32 v{48+i}, s{sT}, v{44+i}\nbuffer_load_dwordx4 {v(RB[j]+4*i,4)}, v{48+i}, {s(WS,4)}, s41 offen offset:{1024*i} sc1")
        for j in range(NB):
            e(f"s_waitcnt vmcnt({4*(NB-1-j)})")
            for i in range(0, 16, 2): e(f"v_pk_add_f32 {v(KV+i,2)}, {v(KV+i,2)}, {v(RB[j]+i,2)}")
        e(f"s_add_u32 s40, s40, {NB}\ns_cmp_lt_u32 s40, {NG-1}\ns_cbranch_scc1 P1_red{NB}")
        if NB > 2: e("s_branch P1_rd")
    e.lab("P1_rd")
    for f in range(2):
        cvt(e, 52 + 4 * f, KV + 8 * f, KV + 8 * f + 1); cvt(e, 53 + 4 * f, KV + 8 * f + 2, KV + 8 * f + 3); cvt(e, 54 + 4 * f, KV + 8 * f + 4, KV + 8 * f + 5)
        e(f"v_cndmask_b32 v{54+4*f}, 0, v{54+4*f}, s[50:51]\nv_mov_b32 v{55+4*f}, 0")
    e(f"""v_and_b32 v50, 3, v0
v_lshlrev_b32 v50, 2, v50
s_mov_b32 s{sT}, 0xa98a
v_lshrrev_b32 v50, v50, s{sT}
v_and_b32 v50, 15, v50
v_and_b32 v51, 48, v0
v_add_lshl_u32 v50, v50, v51, 2
ds_bpermute_b32 v56, v50, v56
ds_bpermute_b32 v57, v50, v57
ds_bpermute_b32 v58, v50, v58
s_mul_i32 s41, s36, {KVF_L}
s_lshl_b32 s{sT}, s35, 11
s_add_u32 s41, s41, s{sT}
s_add_u32 s41, s41, {KVF}
buffer_store_dwordx4 v[52:55], v1, {s(WS,4)}, s41 offen sc1
s_waitcnt lgkmcnt(0)
buffer_store_dwordx4 v[56:59], v1, {s(WS,4)}, s41 offen offset:1024 sc1
s_lshl_b32 s41, s36, 2
s_lshl_b32 s{sT}, s33, 7
s_add_u32 s41, s41, s{sT}
s_add_u32 s41, s41, {F_FIN}"""); signal(e, "s41", 50); lst(e, cfg, 4, 51)
    e.lab("P1_next")
    stamp(e, "s36", cfg['stamp'] and 0)
    e(f"""s_cmp_eq_u32 s36, {cfg['layers']-1}
s_cbranch_scc1 END
s_mov_b32 s36, 1
s_sub_u32 s37, s32, {G0}
s_add_u32 s37, s37, {64 % N3}
s_cmp_ge_u32 s37, {N3}
s_cselect_b32 s{sT}, {N3}, 0
s_sub_u32 s37, s37, s{sT}
s_mov_b32 s38, {N3}
s_branch P1_layer""")

def units48(e, va, nks, W2, soff):
    return [([(va(ks) + d, soff(ks), WT) for d in range(3)],
             [(W2(ks, t, hi), 61, t * 32 + hi * 384) for t in range(3) for hi in range(2)]) for ks in range(nks)]
def addr48(e, dst, rowfn, scol):
    for d in range(3):
        e(f"v_add_u32 v50, {64*d}, v0"); divmod_v(e, 51, 52, 50, 6)
        e("v_lshrrev_b32 v53, 3, v51\nv_and_b32 v54, 7, v51"); rowfn()
        e(f"v_mul_u32_u24 v51, 1152, v51\nv_lshl_add_u32 v51, v52, 4, v51\nv_add_u32 v{dst+d}, {scol}, v51")
def role_p2(e, cfg):
    NG = cfg['ng2']
    W = lambda ks, t: a_((ks * 3 + t) * 4, 4)
    W2 = lambda ks, t, hi: a_((ks * 3 + t) * 4 + 2 * hi, 2)
    e.lab("P2")
    srd(e, WT, 16, 576 * 1152); srd(e, XS, 0, 2048 * 1152)
    e("s_cmp_lg_u32 s2, 255\ns_cbranch_scc1 P2_noinit")
    e(f"v_mov_b32 v8, 0\nv_mov_b32 v9, 0\nv_mov_b32 v10, 0\nv_mov_b32 v11, 0\ns_lshl_b32 s41, s{sW}, 10")
    for i in range(F_END // 4096): e(f"buffer_store_dwordx4 v[8:11], v1, {s(WS,4)}, s41 offen sc1\ns_add_u32 s41, s41, 4096")
    e("s_mov_b32 s41, 128"); signal(e, "s41", 50, DB)
    e.lab("P2_noinit")
    e(f"s_mul_i32 s{sLds}, s{sW}, 40960\ns_mul_i32 s35, s33, 384\ns_mul_i32 s{sT}, s{sW}, 96\ns_add_u32 s35, s35, s{sT}")
    addr48(e, 56, lambda: e("v_lshrrev_b32 v51, 2, v54\nv_mul_u32_u24 v51, 18, v51\nv_lshl_add_u32 v51, v53, 2, v51\nv_and_b32 v54, 3, v54\nv_add_u32 v51, v51, v54"), "s35")
    addr48(e, 64, lambda: e("v_lshrrev_b32 v51, 1, v54\nv_lshl_add_u32 v51, v53, 2, v51\nv_mul_u32_u24 v51, 18, v51\nv_and_b32 v54, 1, v54\nv_add3_u32 v51, v51, v54, 16"), "s35")
    tr_addr(e, 61, 96, 50, 0)
    load_units(e, units48(e, lambda ks: 56 if ks < 16 else 64, 18, W2, lambda ks: (36 * ks if ks < 16 else 288 * (ks - 16)) * 1152), 18432)
    e("v_mov_b32 v4, 128"); wait_flags(e, 4, 0, 5, DB)
    KF, PB, XR, L, AC = 8, 72, 136, 148, 168
    e(f"""v_and_b32 v50, 15, v0
v_lshrrev_b32 v51, 4, v0
v_mul_u32_u24 v2, 1152, v50
v_lshl_add_u32 v2, v51, 3, v2
v_add_u32 v2, s35, v2
v_add_u32 v3, 18432, v2
v_mul_u32_u24 v5, 12, v0
v_and_b32 v51, 1, v51
v_cmp_eq_u32 s[44:45], 1, v51
v_min_u32 v4, 7, v0
v_lshlrev_b32 v4, 7, v4
s_and_b32 s{sT}, s{sW}, 1
s_cselect_b32 s46, 0, -1
s_cselect_b32 s47, -1, 0
s_lshl_b32 s{sT}, s{sW}, 12
v_add_u32 v6, s{sT}, v1
s_lshr_b32 s{sT}, s{sW}, 1
s_lshl_b32 s{sT}, s{sT}, 10
v_add_u32 v208, s{sT}, v1
s_mov_b32 s36, 0
s_barrier""")
    for i in range(16): e(f"v_mov_b32 v{PB+4*i+3}, 0")
    e.lab("P2_layer")
    e(f"s_lshl_b32 s41, s36, 2\ns_add_u32 s41, s41, {F_FIN}"); wait_flags(e, 4, "s41", 200); lst(e, cfg, 5, 200)
    e(f"s_mul_i32 s41, s36, {KVF_L}\ns_lshl_b32 s{sT}, s{sW}, 14\ns_add_u32 s41, s41, s{sT}\ns_add_u32 s41, s41, {KVF}")
    for i in range(16):
        e(f"buffer_load_dwordx4 {v(KF+4*i,4)}, v1, {s(WS,4)}, s41 offen offset:{1024*(i%4)} sc1")
        if i % 4 == 3: e("s_add_u32 s41, s41, 4096")
    e("s_mov_b32 s37, s32")
    e.lab("P2_seg")
    e(f"""s_lshl_b32 s41, s37, 2
s_add_u32 s41, s41, s{sW}
s_mul_i32 s41, s41, 12288
s_mul_i32 s{sT}, s36, {PQ_L}
s_add_u32 s41, s41, s{sT}
s_add_u32 s41, s41, {PQ}""")
    for i in range(16):
        e(f"buffer_load_dwordx3 {v(PB+4*i,3)}, v5, {s(WS,4)}, s41 offen offset:{768*(i%4)} sc1")
        if i % 4 == 3: e("s_add_u32 s41, s41, 3072")
    e("s_mul_i32 s42, s37, 36864\ns_cmp_eq_u32 s36, 0\ns_cbranch_scc0 P2_x2")
    for i in range(6): e(f"buffer_load_dwordx2 {v(XR+2*i,2)}, v{2+i//3}, {s(XS,4)}, s42 offen offset:{32*(i%3)}")
    e(f"s_branch P2_xd\nP2_x2:\ns_add_u32 s41, s42, {X2}")
    for i in range(6): e(f"buffer_load_dwordx2 {v(XR+2*i,2)}, v{2+i//3}, {s(WS,4)}, s41 offen offset:{32*(i%3)} sc1")
    e.lab("P2_xd")
    def mm(u):
        e(f"s_waitcnt vmcnt({6+15-u})")
        d = AC + 8 * (u % 3)
        mfma(e, v(d, 4), v(KF + 8 * (u // 2), 4), v(PB + 4 * u, 4), "0"); mfma(e, v(d + 4, 4), v(KF + 8 * (u // 2) + 4, 4), v(PB + 4 * u, 4), "0")
    mm(0); mm(1)
    for u in range(16):
        if u + 2 < 16: mm(u + 2)
        d = AC + 8 * (u % 3); hh, mt = u // 2, u % 2; o = 192 + 4 * mt + 2 * (hh % 2)
        e(f"v_add_f32 v{d+4}, 0x358637bd, v{d+4}\nv_rcp_f32 v{d+4}, v{d+4}")
        for i in (0, 1, 2, 3, 5, 6): e(f"v_mul_f32 v{d+i}, v{d+i}, v{d+4}")
        cvt(e, o, d, d + 1); cvt(e, o + 1, d + 2, d + 3); cvt(e, L + 8 * mt + hh, d + 5, d + 6)
        if hh % 2: e(f"ds_write_b128 v6, {v(192+4*mt,4)} offset:{(mt*18+hh//2)*1024}")
    for mt in range(2):
        for i in range(4): e(f"v_cndmask_b32 v{200+4*mt+i}, v{L+8*mt+i}, v{L+8*mt+4+i}, s[44:45]")
    e(f"s_mov_b64 exec, s[46:47]\nds_write_b128 v208, v[200:203] offset:{16*1024}\nds_write_b128 v208, v[204:207] offset:{34*1024}\ns_mov_b64 exec, -1\ns_waitcnt lgkmcnt(0)\ns_barrier")
    def body(ks, x):
        for mt in range(2):
            for t in range(3): mfma(e, v(AC + 4 * (3 * mt + t), 4), W(ks, t), x[mt], "0" if ks == 0 else None)
    gemm_x(e, 1, 212, body)
    e(f"s_mul_i32 s{sT}, s36, {X1_L}\ns_add_u32 s41, s42, s{sT}\ns_add_u32 s41, s41, {X1}\ns_waitcnt vmcnt(0)")
    for i in range(6):
        resid_out(e, AC + 4 * i, XR + 2 * i, 192)
        e(f"buffer_store_dwordx2 {v(XR+2*i,2)}, v{2+i//3}, {s(WS,4)}, s41 offen offset:{32*(i%3)} sc1")
    e(f"""s_lshl_b32 s41, s36, 6
s_add_u32 s41, s41, s37
s_mul_i32 s{sT}, s32, 3
s_add_u32 s{sT}, s{sT}, s33
s_lshl_b32 s{sT}, s{sT}, 7
s_add_u32 s41, s41, s{sT}
s_lshl_b32 s41, s41, 2
s_add_u32 s41, s41, {F_X1}"""); signal(e, "s41", 200); lst(e, cfg, 6, 201, 4)
    e(f"""s_add_u32 s37, s37, {NG}
s_cmp_lt_u32 s37, 64
s_cbranch_scc1 P2_seg
s_add_u32 s36, s36, 1
s_cmp_lt_u32 s36, {cfg['layers']}
s_cbranch_scc1 P2_layer
s_branch END""")
```

```python
from gen_common import *
from gen_a import addr48, units48
SC = "0x3e0293ee"
def unit32(va, so, sr, dstep, dst, vtr):
    return ([(va, so, sr), (va, so + dstep, sr)], [(dst(t, hi), vtr, t * 32 + hi * 256) for t in range(2) for hi in range(2) if dst(t, hi)])
def m16(e, d, a, b, c=None): e(f"v_mfma_f32_16x16x16_bf16 {d}, {a}, {b}, {d if c is None else c}")
def softmax(e, vals, m, t):
    e(f"v_max3_f32 v{m}, v{vals[0]}, v{vals[1]}, v{vals[2]}")
    r = vals[3:]
    while len(r) >= 2: e(f"v_max3_f32 v{m}, v{m}, v{r[0]}, v{r[1]}"); r = r[2:]
    if r: e(f"v_max_f32 v{m}, v{m}, v{r[0]}")
    xlane(e, "v_max_f32", m, t)
    e(f"v_mul_f32 v{m}, s30, v{m}")
    for x in vals: e(f"v_fma_f32 v{x}, v{x}, s30, -v{m}")
    for x in vals: e(f"v_exp_f32 v{x}, v{x}")
def role_p3(e, cfg):
    NS = cfg['ns3']
    W = lambda m, ks, t: wreg(((m * 18 + ks) * 2 + t) * 4, 80)
    e.lab("P3")
    e("s_barrier")
    srd(e, WT, 48, 576 * 8192); srd(e, XS, 56, 576 * 8192); srd(e, OUT, 40, 576 * 8192)
    e(f"""s_mul_i32 s{sLds}, s{sW}, 40960
s_lshl_b32 s{sT2}, s52, 8
s_lshl_b32 s{sT}, s{sW}, 6
s_add_u32 s{sT2}, s{sT2}, s{sT}
v_lshrrev_b32 v50, 2, v0
v_and_b32 v51, 3, v0
v_lshlrev_b32 v50, 13, v50
v_lshl_add_u32 v50, v51, 4, v50
v_add_u32 v56, s{sT2}, v50""")
    tr_addr(e, 61, 64, 50, 0)
    load_units(e, [unit32(56, ks * 32 * 8192, sr, 16 * 8192, lambda t, hi: wreg(((m * 18 + ks) * 2 + t) * 4 + 2 * hi, 80, 2), 61)
                   for m, sr in enumerate((WT, XS, OUT)) for ks in range(18)], 20480)
    ln_consts(e, 2, 3, 0, 4)
    e("v_and_b32 v50, 15, v0\nv_lshrrev_b32 v51, 4, v0\nv_lshlrev_b32 v51, 2, v51\nv_sub_u32 v50, v50, v51")
    for i in range(4): e(f"v_cmp_le_i32 {s(44+2*i,2)}, {i}, v50")
    e(f"v_min_u32 v4, 2, v0\nv_lshlrev_b32 v4, 9, v4\nv_mov_b32 v5, 0\ns_mov_b32 s30, {SC}\ns_mov_b32 s36, 0\ns_barrier")
    e("v_bfe_u32 v50, v0, 2, 2\nv_bfe_u32 v51, v0, 4, 1\nv_lshl_add_u32 v50, v50, 1, v51\nv_and_b32 v51, 1, v0\nv_lshl_add_u32 v50, v50, 1, v51\nv_lshlrev_b32 v50, 4, v50\nv_lshrrev_b32 v51, 5, v0\nv_lshl_add_u32 v0, v51, 8, v50")
    stamp(e, 0, cfg['stamp'], 50)
    e.lab("P3_layer")
    e(f"s_mov_b32 s37, s53\ns_mov_b32 s38, 36864\ns_mov_b32 s39, {36864+24576}")
    e.lab("P3_loop")
    e("s_cmp_ge_u32 s37, 64\ns_cbranch_scc1 P3_att")
    e(f"s_lshl_b32 s40, s36, 6\ns_add_u32 s40, s40, s37\ns_and_b32 s41, s37, {cfg['ng2']-1}\ns_mul_i32 s41, s41, 384\ns_add_u32 s41, s41, s40\ns_lshl_b32 s41, s41, 2\ns_add_u32 s41, s41, {F_X1}"); wait_flags(e, 4, "s41", 50); lst(e, cfg, 7, 50, 2)
    e(f"s_mul_i32 s41, s40, 36864\ns_add_u32 s41, s41, {X1}"); ln_load(e, 8, 2, WS, "s41")
    ln_math(e, 8, 44)
    e("s_barrier"); ln_write(e, 8, 3); e("s_waitcnt lgkmcnt(0)\ns_barrier")
    K, V = 8, 24
    def body(ks, x):
        c = "0" if ks == 0 else None
        for mt in range(2):
            for t in range(2):
                mfma(e, v(K + 8 * mt + 4 * t, 4), W(0, ks, t), x[mt], c); mfma(e, v(V + 8 * t + 4 * mt, 4), x[mt], W(1, ks, t), c)
    gemm_x(e, 7, 60, body)
    e(f"""s_lshl_b32 s41, s52, 7
s_add_u32 s40, s40, s41
s_lshl_b32 s41, s36, 5
s_add_u32 s41, s41, s52
s_lshl_b32 s41, s41, 6
s_add_u32 s41, s41, s37
s_lshl_b32 s41, s41, 14
s_add_u32 s41, s41, {KX}
s_lshl_b32 s{sT}, s{sW}, 10
s_add_u32 s41, s41, s{sT}
s_add_u32 s42, s41, 4096
s_add_u32 s43, s41, s{sT}
s_add_u32 s43, s43, 8192
s_add_u32 s{sT2}, s{sT}, s38
v_add_u32 v6, s{sT2}, v1
v_add_u32 v76, s{sT}, v6""")
    for mt in range(2):
        for i in range(4): cvt(e, 40 + 4 * mt + i, K + 8 * mt + i, K + 8 * mt + 4 + i)
        e(f"buffer_store_dwordx4 {v(40+4*mt,4)}, v1, {s(WS,4)}, s{41+mt} offen sc1\nds_write_b128 v6, {v(40+4*mt,4)} offset:{4096*mt}")
    for t in range(2):
        for i in range(4): cvt(e, 48 + 4 * t + i, V + 8 * t + 2 * i, V + 8 * t + 2 * i + 1)
        e(f"buffer_store_dwordx4 {v(48+4*t,4)}, v1, {s(WS,4)}, s43 offen offset:{1024*t} sc1\nds_write_b128 v76, {v(48+4*t,4)} offset:{16384+1024*t}")
    e(f"s_lshl_b32 s41, s40, 2\ns_waitcnt lgkmcnt(0)")
    def bodyq(ks, x):
        if ks == cfg['ksig']: signal(e, "s41", 56); lst(e, cfg, 8, 57, 2)
        for mt in range(2):
            for t in range(2): mfma(e, v(K + 8 * mt + 4 * t, 4), W(2, ks, t), x[mt], "0" if ks == 0 else None)
    gemm_x(e, 7, 60, bodyq)
    for mt in range(2):
        for i in range(4): cvt(e, 40 + 4 * mt + i, K + 8 * mt + i, K + 8 * mt + 4 + i)
        e(f"ds_write_b128 v6, {v(40+4*mt,4)} offset:{8192+4096*mt}")
    e("s_waitcnt lgkmcnt(0)")
    e.lab("P3_att")
    e(f"s_cmp_lt_u32 s37, {NS}\ns_cbranch_scc1 P3_next\ns_barrier\nv_add_u32 v6, s39, v1\ns_lshl_b32 s{sT}, s{sW}, 11\nv_add_u32 v76, s{sT}, v6")
    Q, S = 8, 56
    for i in range(8): e(f"ds_read_b128 {v(Q+4*i,4)}, v6 offset:{8192+1024*i}")
    for kt in range(2):
        for ks in range(4): e(f"ds_read_b128 {v(40+4*ks,4)}, v6 offset:{4096*kt+1024*ks}")
        e("s_waitcnt lgkmcnt(0)")
        for ks in range(4):
            c = "0" if ks == 0 else None
            if kt == 0: mfma(e, v(S, 4), v(40 + 4 * ks, 4), v(Q + 4 * ks, 4), c)
            mfma(e, v(S + 4 + 4 * kt, 4), v(40 + 4 * ks, 4), v(Q + 16 + 4 * ks, 4), c)
    e(f"""s_lshl_b32 s40, s36, 6
s_add_u32 s40, s40, s37
s_sub_u32 s40, s40, {NS}
s_lshl_b32 s43, s52, 7
s_add_u32 s43, s43, s40
s_lshl_b32 s41, s36, 5
s_add_u32 s41, s41, s52
s_lshl_b32 s41, s41, 6
s_add_u32 s41, s41, s37
s_lshl_b32 s42, s41, 2
s_add_u32 s42, s42, {F_M-4*NS}"""); wait_flags(e, 5, "s42", 77, sleep=cfg['sl3']); lst(e, cfg, 9, 77)
    e(f"""s_lshl_b32 s41, s41, 12
s_add_u32 s41, s41, {KM-4096*NS}
s_lshl_b32 s42, s{sW}, 9
s_add_u32 s42, s42, s41
v_lshrrev_b32 v77, 1, v1""")
    for ks in range(4): e(f"buffer_load_dwordx4 {v(40+4*ks,4)}, v0, {s(WS,4)}, s41 offen offset:{512*ks} sc1")
    e(f"buffer_load_dwordx2 v[78:79], v77, {s(WS,4)}, s42 offen offset:2048 sc1\nv_mov_b32 v77, 0xff800000")
    for i in range(4): e(f"v_cndmask_b32 v{S+i}, v77, v{S+i}, {s(44+2*i,2)}\nv_cndmask_b32 v{S+8+i}, v77, v{S+8+i}, {s(44+2*i,2)}")
    for ks in range(4):
        e(f"s_waitcnt vmcnt({4-ks})")
        for mt in range(2): mfma(e, v(S + 12 + 4 * mt, 4), v(40 + 4 * ks, 4), v(Q + 16 * mt + 4 * ks, 4), "0" if ks == 0 else None)
    e("ds_read_b128 v[8:11], v76 offset:16384\nds_read_b128 v[12:15], v76 offset:17408")
    for i in range(4): e(f"v_mov_b32 v{16+i}, 0x3f803f80")
    for r in (22, 23, 29, 30, 33, 34): e(f"v_mov_b32 v{r}, 0")
    softmax(e, [S, S + 1, S + 2, S + 3, S + 12, S + 13], 36, 37)
    softmax(e, list(range(S + 4, S + 12)) + [S + 16, S + 17], 36, 37)
    cvt(e, 20, S, S + 1); cvt(e, 21, S + 2, S + 3)
    for i in range(4): cvt(e, 24 + i, S + 4 + 2 * i, S + 5 + 2 * i)
    for mt in range(2): cvt(e, 28 + 4 * mt, S + 12 + 4 * mt, S + 13 + 4 * mt); cvt(e, 31 + 4 * mt, S + 12 + 4 * mt, S + 13 + 4 * mt)
    e("s_waitcnt vmcnt(0) lgkmcnt(0)")
    for mt in range(2): m16(e, v(56 + 4 * mt, 4), v(16, 2), v(28 + 4 * mt, 2), "0")
    for mt in range(2):
        for t in range(2): m16(e, v(40 + 8 * mt + 4 * t, 4), v(78, 2), v(28 + 4 * mt + 2 * t, 2), "0")
    for mt in range(2): mfma(e, v(56 + 4 * mt, 4), v(16, 4), v(20 + 4 * mt, 4))
    for mt in range(2):
        for t in range(2): mfma(e, v(40 + 8 * mt + 4 * t, 4), v(8 + 4 * t, 4), v(20 + 4 * mt, 4))
    e(f"""v_rcp_f32 v56, v56
v_rcp_f32 v60, v60
s_lshl_b32 s41, s40, 6
s_add_u32 s41, s41, s52
s_lshl_b32 s41, s41, 2
s_add_u32 s41, s41, s{sW}
s_lshl_b32 s41, s41, 10
s_add_u32 s41, s41, {OB}
s_add_u32 s42, s41, 0x20000""")
    for mt in range(2):
        for i in range(8): e(f"v_mul_f32 v{40+8*mt+i}, v{40+8*mt+i}, v{56+4*mt}")
        for i in range(4): cvt(e, 64 + 4 * mt + i, 40 + 8 * mt + 2 * i, 41 + 8 * mt + 2 * i)
        e(f"buffer_store_dwordx4 {v(64+4*mt,4)}, v1, {s(WS,4)}, s{41+mt} offen sc1")
    e(f"s_lshl_b32 s41, s43, 2\ns_add_u32 s41, s41, {F_O}"); signal(e, "s41", 77); lst(e, cfg, 10, 78)
    e.lab("P3_next")
    e(f"""s_mov_b32 s{sT}, s38
s_mov_b32 s38, s39
s_mov_b32 s39, s{sT}
s_add_u32 s37, s37, {NS}
s_cmp_lt_u32 s37, {64+NS}
s_cbranch_scc1 P3_loop
s_add_u32 s36, s36, 1
s_cmp_lt_u32 s36, {cfg['layers']}
s_cbranch_scc1 P3_layer
s_branch END""")

def role_p4(e, cfg):
    NG = cfg['ng4']
    W = lambda ks, t: wreg((ks * 3 + t) * 4, 128)
    W2 = lambda ks, t, hi: wreg((ks * 3 + t) * 4 + 2 * hi, 128, 2)
    e.lab("P4")
    srd(e, WT, 64, 4096 * 1152); srd(e, OUT, 80, 2048 * 1152)
    e(f"s_mul_i32 s{sLds}, s{sW}, 40960\ns_mul_i32 s35, s33, 96\ns_mul_i32 s{sT}, s{sW}, {1024*1152}\ns_add_u32 s40, s35, s{sT}")
    addr48(e, 56, lambda: e("v_lshrrev_b32 v51, 2, v54\nv_lshlrev_b32 v51, 4, v51\nv_lshl_add_u32 v51, v53, 2, v51\nv_and_b32 v54, 3, v54\nv_add_u32 v51, v51, v54"), "s40")
    tr_addr(e, 61, 96, 50, 0)
    load_units(e, units48(e, lambda ks: 56, 32, W2, lambda ks: 32 * ks * 1152), 18432)
    e("v_mov_b32 v4, 128"); wait_flags(e, 4, 0, 5, DB)
    e(f"""v_and_b32 v50, 15, v0
v_lshrrev_b32 v51, 4, v0
v_mul_u32_u24 v2, 1152, v50
v_lshl_add_u32 v2, v51, 3, v2
s_min_u32 s{sT}, s{sW}, 2
s_lshl_b32 s{sT2}, s{sT}, 5
s_add_u32 s35, s35, s{sT2}
v_add_u32 v2, s35, v2
s_lshl_b32 s{sT}, s{sT}, 10
v_add_u32 v5, s{sT}, v1
s_mul_i32 s{sT}, s{sW}, 3072
v_add_u32 v3, s{sT}, v1
v_and_b32 v4, 7, v0
s_lshl_b32 s{sT}, s{sW}, 3
v_add_lshl_u32 v4, v4, s{sT}, 9
s_mov_b32 s36, 0
s_barrier""")
    NF = 24; AC = 104
    e.lab("P4_layer"); e("s_mov_b32 s37, s32"); e.lab("P4_unit")
    e(f"s_lshl_b32 s40, s36, 7\ns_add_u32 s40, s40, s37\ns_lshr_b32 s41, s40, 1\ns_lshl_b32 s41, s41, 2\ns_add_u32 s41, s41, {F_O}"); wait_flags(e, 4, "s41", 8, sleep=1); lst(e, cfg, 11, 8)
    e(f"""s_mul_i32 s42, s40, 18432
s_add_u32 s42, s42, {X1}
buffer_load_dwordx2 v[116:117], v2, {s(WS,4)}, s42 offen sc1
s_lshl_b32 s41, s40, 2
s_add_u32 s41, s41, s{sW}
s_lshl_b32 s41, s41, 15
s_add_u32 s41, s41, {OB}""")
    def ld(ks):
        e(f"buffer_load_dwordx4 {v(8+4*(ks%NF),4)}, v1, {s(WS,4)}, s41 offen offset:{1024*(ks%4)} sc1")
        if ks % 4 == 3: e("s_add_u32 s41, s41, 4096")
    for ks in range(NF): ld(ks)
    for ks in range(32):
        e(f"s_waitcnt vmcnt({min(NF-1, 31-ks)})")
        for t in range(3): mfma(e, v(AC + 4 * t, 4), W(ks, t), v(8 + 4 * (ks % NF), 4), "0" if ks == 0 else None)
        if ks + NF < 32: ld(ks + NF)
    for t in range(3): e(f"ds_write_b128 v3, {v(AC+4*t,4)} offset:{1024*t}")
    e("s_waitcnt lgkmcnt(0)\ns_barrier")
    for w in range(4): e(f"ds_read_b128 {v(8+4*w,4)}, v5 offset:{3072*w}")
    e("s_waitcnt lgkmcnt(0)")
    for i in range(4): e(f"v_add_f32 v{8+i}, v{8+i}, v{12+i}\nv_add_f32 v{16+i}, v{16+i}, v{20+i}")
    for i in range(4): e(f"v_add_f32 v{8+i}, v{8+i}, v{16+i}")
    resid_out(e, 8, 116, 24)
    e(f"""s_mul_i32 s42, s37, 18432
s_cmp_eq_u32 s36, {cfg['layers']-1}
s_cbranch_scc1 P4_out
s_add_u32 s42, s42, {X2}
s_cmp_eq_u32 s{sW}, 3
s_cbranch_scc1 P4_s1
buffer_store_dwordx2 v[116:117], v2, {s(WS,4)}, s42 offen sc1
P4_s1:
s_lshr_b32 s41, s37, 1
s_and_b32 s{sT}, s37, 1
s_mul_i32 s{sT}, s{sT}, 12
s_add_u32 s{sT}, s{sT}, s33
s_lshl_b32 s{sT}, s{sT}, 6
s_add_u32 s41, s41, s{sT}
s_lshl_b32 s41, s41, 2
s_add_u32 s41, s41, {F_X2}"""); signal(e, "s41", 8); lst(e, cfg, 12, 9)
    e(f"""s_branch P4_next
P4_out:
s_cmp_eq_u32 s{sW}, 3
s_cbranch_scc1 P4_s2
buffer_store_dwordx2 v[116:117], v2, {s(OUT,4)}, s42 offen
P4_s2:
s_barrier
P4_next:
s_add_u32 s37, s37, {NG}
s_cmp_lt_u32 s37, 128
s_cbranch_scc1 P4_unit
s_add_u32 s36, s36, 1
s_cmp_lt_u32 s36, {cfg['layers']}
s_cbranch_scc1 P4_layer""")
    stamp(e, 4, cfg['stamp'])
    e("s_branch END")
```

```python
from gen_common import *
from gen_b import unit32, m16, SC
LPAIR = [('Q',0),('Q',2),('Q',4),('Q',6)]
OPAIR = [(0,0),(0,1),(4,0),(4,1),(6,1)]
LOP = {}
for i, (m, t) in enumerate(LPAIR): LOP[(m,t,0)] = 2*i; LOP[(m,t,1)] = 2*i+1
for i, (t, t2) in enumerate(OPAIR): LOP[('O',t,t2)] = 8+2*i; LOP[('O',t+1,t2)] = 9+2*i
ROP = {}
for m in 'QKVO':
    for t in range(9):
        for x in range(2):
            if (m,t,x) not in LOP: ROP[(m,t,x)] = len(ROP)
assert len(ROP) == 54
vL, vI, vP, vM, vX, vO, vW = 1, 0, 2, 3, 4, 5, 6
A0, QA, KA, SA, SB = 8, 44, 52, 60, 68
OWN = [[0, 1], [2, 3], [4, 5], [6, 7, 8]]; NK = [3, 3, 2]
class Lg:
    def __init__(s_, e): s_.e = e; s_.q = []
    def op(s_, txt, tag): s_.e(txt); s_.q.append(tag)
    def wait(s_, *tags):
        idx = [i for i, t in enumerate(s_.q) if t in tags]
        if not idx: return
        n = len(s_.q) - 1 - max(idx); s_.e(f"s_waitcnt lgkmcnt({n})"); s_.q = s_.q[max(idx)+1:]
    def all(s_): s_.e("s_waitcnt lgkmcnt(0)"); s_.q = []
def chain_setup(e, cfg):
    e.lab("CH")
    e(f"""s_setprio 3
s_getreg_b32 s54, hwreg(HW_REG_XCC_ID, 0, 4)
s_add_u32 s54, s54, 1
s_mul_i32 s{sLds}, s{sW}, 36864
s_add_u32 s{sLds}, s{sLds}, 16384
v_add_u32 v{vW}, s{sLds}, v1
s_lshl_b32 s{sT}, s{sW}, 3
v_lshrrev_b32 v50, 3, v0
v_add_u32 v50, s{sT}, v50
v_mul_u32_u24 v50, {cfg['ps']}, v50
v_add_lshl_u32 v50, v50, s52, 7
v_and_b32 v51, 7, v0
v_lshl_add_u32 v{vP}, v51, 4, v50
s_mul_i32 s59, s52, {cfg['ps']*128}
s_lshl_b32 s{sT}, s{sW}, 12
s_add_u32 s59, s59, s{sT}
s_add_u32 s59, s59, {PART}
s_mov_b32 s60, {PART}
s_mov_b32 s61, {PART+4096}
s_mov_b32 s62, {PART+8192}
v_and_b32 v50, 15, v0
v_cmp_gt_u32 s[46:47], 6, v50
v_lshrrev_b32 v51, 1, v50
s_mul_i32 s63, s{sW}, 3072
v_lshl_add_u32 v{vM}, v51, 10, s63
v_and_b32 v51, 1, v0
v_lshl_add_u32 v{vM}, v51, 4, v{vM}
s_lshr_b32 s{sT}, s52, 1
s_lshl_b32 s{sT}, s{sT}, 6
s_and_b32 s{sT2}, s52, 1
s_lshl_b32 s{sT2}, s{sT2}, 5
s_add_u32 s{sT}, s{sT}, s{sT2}
v_add_u32 v{vM}, s{sT}, v{vM}
v_bfe_u32 v51, v0, 4, 1
v_lshl_add_u32 v{vM}, v51, 3, v{vM}
v_lshrrev_b32 v51, 5, v0
v_lshl_add_u32 v{vM}, v51, 2, v{vM}
s_mov_b32 s56, {RING}
s_mov_b32 s57, {RING+9216}
s_mov_b32 s58, {RING+18432}
v_mov_b64 v[8:9], 0
v_mov_b64 v[10:11], 0
v_mov_b32 v12, -1""")
    for u in range(3): e(f"buffer_store_dwordx4 v[8:11], v{vP}, {s(WS,4)}, s{60+u} offen sc1")
    e(f"s_cmp_eq_u32 s{sW}, 3\ns_cbranch_scc1 CH_np\ns_mov_b64 exec, s[46:47]")
    for u in range(3): e(f"buffer_store_dword v12, v{vM}, {s(WS,4)}, s{56+u} offen sc1")
    e("s_mov_b64 exec, -1\nCH_np:\ns_lshl_b32 s41, s52, 2"); signal(e, "s41", 50, DB, "s54")
    srd(e, WT, 40, 576*8192); srd(e, XS, 48, 576*8192); srd(e, OUT, 56, 576*8192); srd(e, 64, 64, 4096*1152); srd(e, 32, 32, 9216)
    e(f"""v_lshrrev_b32 v50, 4, v0
v_bfe_u32 v51, v0, 3, 1
v_bfe_u32 v52, v0, 2, 1
v_and_b32 v53, 3, v0
v_lshl_add_u32 v54, v50, 1, v52
v_lshl_add_u32 v54, v51, 3, v54
v_lshlrev_b32 v54, 13, v54
v_lshl_add_u32 v54, v53, 4, v54
s_lshl_b32 s{sT2}, s52, 8
s_lshl_b32 s{sT}, s{sW}, 6
s_add_u32 s{sT2}, s{sT2}, s{sT}
v_add_u32 v76, s{sT2}, v54
v_lshrrev_b32 v54, 1, v50
v_lshlrev_b32 v54, 4, v54
v_lshl_add_u32 v54, v51, 2, v54
v_and_b32 v50, 1, v50
v_lshl_add_u32 v54, v50, 1, v54
v_add_u32 v54, v54, v52
v_mul_u32_u24 v54, 1152, v54
v_and_b32 v50, 1, v53
v_lshl_add_u32 v54, v50, 4, v54
s_mul_i32 s{sT2}, s52, {128*1152}
s_lshl_b32 s{sT}, s{sW}, 5
s_add_u32 s{sT2}, s{sT2}, s{sT}
v_add_u32 v78, s{sT2}, v54
v_lshrrev_b32 v50, 1, v53
v_lshl_add_u32 v77, v50, 7, v78""")
    tr_addr(e, 79, 64, 50, 0)
    def unit(m, t, h, dst):
        if m == 'O': return unit32(77 if t < 8 else 78, h*32*1152 + t*128, 64, 8*1152, dst, 79)
        return unit32(76, (2*t+h)*32*8192, {'Q': WT, 'K': XS, 'V': OUT}[m], 16*8192, dst, 79)
    us = []
    for m in 'QKV':
        for t in range(9):
            if (m,t,0) in ROP:
                for h in range(2): us.append(unit(m, t, h, lambda tn, hi: wreg(ROP[(m,t,tn)]*8 + 4*h + 2*hi, 80, 2)))
    for t in range(0, 9, 2):
        for h in range(4):
            if ('O',t,h//2) in ROP: us.append(unit('O', t, h, lambda tn, hi: wreg(ROP[('O',t+tn,h//2)]*8 + 4*(h%2) + 2*hi, 80, 2) if t+tn < 9 else None))
    load_units(e, us, 18432)
    lp = [[unit(m, t, h, lambda tn, hi: v(8 + 8*tn + 4*h + 2*hi, 2)) for h in range(2)] for m, t in LPAIR]
    lp += [[unit('O', t, 2*t2+h, lambda tn, hi: v(8 + 8*tn + 4*h + 2*hi, 2)) for h in range(2)] for t, t2 in OPAIR]
    for p, pr in enumerate(lp):
        for h in range(2):
            for i, (va, so, sr) in enumerate(pr[h][0]):
                e(f"s_add_u32 m0, s{sLds}, {p*4096+h*2048+i*1024}\ns_mov_b32 s{sT}, {so}\nbuffer_load_dwordx4 v{va}, {s(sr,4)}, s{sT} offen lds")
    for p, pr in enumerate(lp):
        e(f"s_waitcnt vmcnt({4*(8-p)})")
        for h in range(2):
            for dst, va, imm in pr[h][1]: e(f"ds_read_b64_tr_b16 {dst}, v{va} offset:{p*4096+h*2048+imm}")
        e("s_waitcnt lgkmcnt(0)")
        for i in range(4): e(f"ds_write_b128 v{vW}, {v(8+4*i,4)} offset:{p*4096+i*1024}")
        e("s_waitcnt lgkmcnt(0)")
    e(f"""v_and_b32 v50, 15, v0
s_mov_b32 s55, 0x3f80
v_lshrrev_b32 v51, 2, v50
v_lshrrev_b32 v52, 4, v0
v_and_b32 v53, 3, v0
v_lshlrev_b32 v{vX}, 8, v51
v_lshl_add_u32 v{vX}, v52, 6, v{vX}
v_lshl_add_u32 v{vX}, v53, 2, v{vX}
s_lshl_b32 s{sT}, s{sW}, 10
s_add_u32 s{sT}, s{sT}, 3072
v_add_u32 v{vX}, s{sT}, v{vX}
v_cmp_le_u32 s[44:45], 2, v53
v_and_b32 v53, 1, v0
v_lshlrev_b32 v51, 6, v51
v_lshl_add_u32 v51, v53, 4, v51
v_and_b32 v54, 1, v52
v_lshl_add_u32 v51, v54, 5, v51
v_lshrrev_b32 v54, 1, v52
v_lshl_add_u32 v51, v54, 8, v51
s_lshl_b32 s{sT}, s{sW}, 9
v_add_u32 v{vO}, s{sT}, v51
v_mov_b32 v55, 128"""); wait_flags(e, 55, 0, 56, DB)
    e("v_and_b32 v55, 31, v0\nv_lshlrev_b32 v55, 2, v55"); wait_flags(e, 55, 0, 56, DB)
    e(f"""v_cmp_ne_u32 vcc, s54, v56
v_mov_b32 v51, 0x4444
v_mov_b32 v52, 0xeeee
s_mov_b32 s30, {SC}
s_mov_b32 s31, 1
s_mov_b32 s36, 0
v_cndmask_b32 v{vI}, v51, v52, s[44:45]
s_waitcnt lgkmcnt(0)
s_barrier""")
    stamp(e, 0, cfg['stamp'])
    e("s_cbranch_vccnz CH_far")
    for md in "nf":
        if md == 'f': e.lab("CH_far")
        for w in range(3): e(f"s_cmp_eq_u32 s{sW}, {w}\ns_cbranch_scc1 CH{md}{w}_layer")
        e(f"s_branch CH{md}3_layer")

def chain_wave(e, cfg, md, w):
    N = f"CH{md}{w}"; st = "sc1" if md == 'f' else ""
    e.phys = 1; lg = Lg(e); G = [(w+i) % 4 for i in range(4)]; no = len(OWN[w])
    def wop(k): return wreg(ROP[k]*8, 80, 8)
    def sm(d, a, b): e(f"v_smfmac_f32_16x16x64_bf16 {v(d,4)}, {v(a,4)}, {b}, v{vI}")
    def rdw(k, dst):
        for h in range(2): lg.op(f"ds_read_b128 {v(dst+4*h,4)}, v{vW} offset:{LOP[k]*2048+h*1024}", k)
    def rd(dst, off, tag): lg.op(f"ds_read_b128 {v(dst,4)}, v{vL} offset:{off}", tag)
    def zero(r0, n):
        for i in range(0, n, 2): e(f"v_mov_b64 {v(r0+i,2)}, 0")
    def gload():
        for i in range(no): e(f"buffer_load_dwordx4 {v(A0+8*w+4*i,4)}, v{vL}, {s(WS,4)}, s40 offen offset:{1024*i} sc1")
    def gcheck():
        l, d = e.uid("gc"), e.uid("gd"); b = A0 + 8*w; n = 0; M = ["s[94:95]", "vcc", "s[50:51]"]
        e(f"s_mov_b32 s29, 0\ns_waitcnt vmcnt({n})"); tick(11); e(f"{l}:")
        for i in range(no): e(f"v_max3_u32 v{76+i}, v{b+4*i}, v{b+4*i+1}, v{b+4*i+2}")
        for i in range(no): e(f"v_max_u32 v{76+i}, v{76+i}, v{b+4*i+3}")
        for i in range(no): e(f"v_cmp_eq_u32 {M[i]}, -1, v{76+i}")
        e("s_or_b64 s[68:69], s[94:95], vcc" + ("\ns_or_b64 s[68:69], s[68:69], s[50:51]" if no == 3 else "") + f"\ns_cbranch_scc0 {d}")
        for i in range(no): e(f"s_mov_b64 exec, {M[i]}\nbuffer_load_dwordx4 {v(b+4*i,4)}, v{vL}, {s(WS,4)}, s40 offen offset:{1024*i} sc1")
        e(f"s_mov_b64 exec, -1\ns_add_u32 s29, s29, 1\ns_add_u32 s90, s90, 1\ns_cmp_lt_u32 s29, s{sDead}\ns_waitcnt vmcnt({n})\ns_cbranch_scc1 {l}\ns_mov_b32 s{sDead}, 0\n{d}:")
        tick(12)
        for i in range(2): lg.op(f"ds_write_b128 v{vL}, {v(b+4*i,4)} offset:{2048*w+1024*i}", 'gw')
    def prep():
        zero(QA, 16); rdw(('Q',2*w,0), SA); rdw(('Q',2*w,1), SB)
    tr = lambda i: 70 + 2*cfg['ticks'].index(i)
    def tick(i):
        if cfg['stamp'] and w == cfg.get('tw', 0) and i in cfg.get('ticks', ()): e(f"s_memtime {s(tr(i),2)}")
    e.lab(N + "_layer")
    e(f"""s_mov_b32 s37, 0
s_lshl_b32 s43, s52, 1
s_add_u32 s43, s43, s36
s_lshl_b32 s43, s43, 8
s_lshl_b32 s42, s36, 5
s_add_u32 s42, s42, s52
s_lshl_b32 s38, s42, 20
s_add_u32 s38, s38, {KX+2048*w}
s_lshl_b32 s42, s42, 18
s_add_u32 s42, s42, {KM}""")
    def kdma():
        e(f"s_add_u32 s41, s38, {1024*w}\ns_mov_b32 m0, {8192+3072*w}")
        for i in range(NK[w]): e(f"buffer_load_dwordx4 v{vL}, {s(WS,4)}, s41 offen offset:{1024*i} sc1 lds")
    if w == 3: e(f"v_bfe_u32 v76, v{vL}, 4, 1\nv_lshlrev_b32 v76, 2, v76"); wait_flags(e, 76, "s43", 77, sleep=1)
    e(f"v_bfe_u32 v76, v{vL}, 6, 2\nv_bfe_u32 v77, v{vL}, 4, 1\nv_lshl_add_u32 v76, v76, 1, v77\nv_mul_u32_u24 v76, 1152, v76\nv_bfe_u32 v77, v{vL}, 5, 1\nv_lshl_add_u32 v76, v77, 4, v76\nv_lshrrev_b32 v77, 8, v{vL}\nv_lshl_add_u32 v76, v77, 5, v76")
    for t in sorted(set(OWN[w] + [8])): e(f"buffer_load_dwordx4 {v(A0+4*t,4)}, v76, s[32:35], 0 offen offset:{128*t}")
    e("s_barrier")
    if w < 3: kdma()
    e(f"s_add_u32 s40, s56, {2048*w}")
    prep()
    e.lab(N + "_step")
    tick(0)
    gcheck()
    if w < 2: e(f"s_cmp_lt_u32 s37, 63\ns_cselect_b32 s40, 16384, 0\ns_add_u32 s40, s40, s38\ns_add_u32 s40, s40, {6144*w}\nv_lshlrev_b32 v7, 3, v{vL}")
    e("s_add_u32 s41, s38, 8192\ns_add_u32 s39, s56, 8192\ns_cmp_eq_u32 s37, 0"); b0 = cfg['b0']
    if cfg['stamp'] and w == 0 and cfg.get('steps'):
        e(f"s_lshl_b32 s92, s36, 6\ns_add_u32 s92, s92, s37\ns_lshl_b32 s92, s92, 2\ns_add_u32 s92, s92, 512"); stamp(e, "s92", 1)
    from collections import defaultdict
    pre, val = defaultdict(list), defaultdict(list)
    def slot(p):
        for f in pre.pop(p, []) + val.pop(p, []): e(f) if isinstance(f, str) else f()
    def rh(k, dst, h): return lambda: lg.op(f"ds_read_b128 {v(dst+4*h,4)}, v{vW} offset:{LOP[k]*2048+h*1024}", k)
    pka = lambda d: f"v_pk_add_f32 {v(d,2)}, {v(d,2)}, {v(d+2,2)}"
    ad = lambda d: f"v_add_f32 v{d}, v{d}, v{d+2}"
    cv = lambda d, a, b: f"v_cvt_pk_bf16_f32 v{d}, v{a}, v{b}"
    z = lambda r: f"v_mov_b64 {v(r,2)}, 0"
    stg = [('Q',2*g,x) for g in G for x in range(2)]
    pos, sb = [0, 1, 8, 13, 18, 23, 28, 32], [SA, SB] + [SA]*6
    ok = lambda ts, ms: [(m,t,x) for t in ts for m in ms for x in range(2) if (m,t,x) not in LOP]
    T = [t for g in G for t in OWN[g]]
    if w != 3: T.remove(8); T.append(8)
    rest = ok(T[:2], 'K') + ok(T[:2], 'Q') + ok(T[2:], 'K') + ok(T[2:], 'Q') if w < 3 else ok(T, 'K') + ok(T, 'Q')
    seq = [stg[pos.index(p)] if p in pos else rest.pop(0) for p in range(36)] + [('V',t,x) for t in range(9) for x in range(2)]
    ra = lambda t: (lambda: rd(A0+4*t, 1024*t, f"A{t}"))
    pre[b0].append(lambda: (lg.wait('gw'), e("s_barrier"), tick(1)))
    if w != 3: pre[b0+1].append(f"{'s_cmp_eq_u32 s37, 0' if cfg.get('steps') else ''}\ns_cbranch_scc1 {N}_n8\nbuffer_load_dwordx4 {v(A0+32,4)}, v{vL}, {s(WS,4)}, s39 offen sc1\n{N}_n8:")
    tl = [t for t in T[no:] if t < 8]
    for i in range(2): pre[i].insert(0, rh(stg[2], SA, i))
    for p, t in zip([p for p in range(b0, 12) if p != 8], tl): pre[p].append(ra(t))
    for i in range(3, 8): pre[pos[i-1]] += [rh(stg[i], SA, 0), rh(stg[i], SA, 1)]
    pb = cfg['pb']
    pre[pb].append(lambda: (tick(8), lg.wait(f"A{tl[-1]}"), e("s_barrier"), tick(9)))
    for i in range(2): pre[b0+2+i].append(f"buffer_load_dwordx4 {v(SB+4*i,4)}, v{vL}, {s(WS,4)}, s41 offen offset:{1024*i} sc1")
    p8 = seq.index(('K',8,0)) - 2 if w != 3 else 20
    if w < 3: pre[p8+1].insert(0, lambda: (tick(14), e(f"s_waitcnt vmcnt({2 if w == 2 else 3})"), tick(15))); assert b0 + cfg['pw'] < p8 < 23
    pre[41].append(f"s_waitcnt vmcnt({0 if w == 2 else 1})"); assert cfg['pf'] > 41
    if w < 2:
        pre[b0+cfg['pw']].append(f"buffer_load_dword v7, v7, {s(WS,4)}, s40 offen sc1")
    if w == 3: pre[b0+cfg['pw']].append(f"buffer_load_dword v{vM}, off, {s(WS,4)}, s43 offset:8 sc1")
    for p, x in zip(range(26, 32), [ad(KA), ad(KA+4), ad(KA+1), ad(KA+5), cv(78, KA, KA+4), cv(79, KA+1, KA+5)]): val[p].append(x)
    pre[33].append(lambda: lg.op(f"ds_write2_b32 v{vX}, v78, v79 offset0:0 offset1:4", 'q'))
    for i in range(4): val[min(33+i, 35)].append(z(SA+2*i))
    val[36] += [ad(QA), ad(QA+1)]; val[37] += [ad(QA+4), ad(QA+5)]; val[38] += [cv(76, QA, QA+4), cv(77, QA+1, QA+5)]
    pre[39].append(lambda: lg.op(f"ds_write2_b32 v{vX}, v76, v77 offset0:8 offset1:12", 'k')); pre[42].append("s_add_u32 s39, s42, 2048")
    b3 = cfg['b3']
    pre[b3].append(lambda: (lg.all(), e("s_barrier")))
    XR = [[8, 16, 20, 24], [12, 28, 32, 36]]; F = lambda i: v(QA+4*i, 4)
    rq = [(QA+4*i, 3072+1024*i, f"F{i}") for i in range(4)] + [(XR[kt][ks], 8192+4096*kt+1024*ks, f"x{kt}{ks}") for kt in range(2) for ks in range(4)]
    for i, r in enumerate(rq): pre[b3+i].append(lambda r=r: rd(*r))
    pre[52].insert(0, lambda: lg.wait("F3")); pre[57].append(lambda: lg.wait("x10"))
    if w == 3:
        pre[15].append(f"s_lshr_b32 s41, s42, 10\ns_sub_u32 s41, s41, {(KM>>10)-F_M+4}"); pre[16].append("s_cmp_lg_u32 s37, 0\ns_cselect_b64 s[48:49], 1, 0")
        pre[cfg['pf']].append(f"s_mov_b64 exec, s[48:49]\nbuffer_store_dword v{vI}, off, {s(WS,4)}, s41 sc1\ns_mov_b64 exec, -1")
    for p, k in enumerate(seq):
        m, t, tn = k
        lg.wait(f"A{t}", k)
        sm({'Q': QA, 'K': KA, 'V': SA}[m] + 4*tn, A0+4*t, v(sb[stg.index(k)],8) if k in LOP else wop(k))
        if p < 53 and (pre[p] or val[p]): lg.wait(f"A{seq[p+1][1]}", seq[p+1])
        slot(p)
        if p == 35: tick(2)
    val[54].append(ad(SA)); val[55].append(ad(SA+1)); val[56] += [ad(SA+4), ad(SA+5)]; val[57] += [cv(42, SA, SA+1), cv(43, SA+4, SA+5)]; val[54].append(f"v_lshrrev_b32 v41, 1, v{vL}")
    if w >= cfg.get('nof', 0): pre[58+w].append(f"s_andn2_b64 exec, exec, s[44:45]\nbuffer_store_dwordx4 {F(w)}, v{vO}, {s(WS,4)}, s42 offen sc1\ns_mov_b64 exec, -1")
    if w >= cfg.get('nov', 0): pre[58+(w+2)%4].append(f"buffer_store_dwordx2 v[42:43], v41, {s(WS,4)}, s39 offen offset:{512*w} sc1")
    val[62] += ["v_mov_b32 v16, 0x3f803f80", "v_mov_b32 v17, v16"]; val[63] += ["v_mov_b64 v[18:19], v[16:17]", "v_max3_f32 v40, v76, v77, v8"]
    val[64] += ["v_max3_f32 v40, v40, v9, v10", "v_max_f32 v40, v40, v11"]; val[65] += ["v_mov_b32 v21, 0", "v_mov_b32 v22, 0"]
    wo = [('O', t, t2) for t in (0,1,2,3,4,5,8,6,7) for t2 in range(2)]; wl = [k for k in wo if k in LOP]; bufs = [44, 52, 32, 60]
    for h in range(2): pre[65].append(rh(wl[0], 44, h))
    assert all(p < 26 - (k[2] == 0) for p, k in enumerate(seq) if k[0] == 'K') and seq[35][2] == 1
    for i in range(12):
        kt, ks = i//4 - 1, i % 4
        mfma(e, v([8,12,76][kt],4), v(XR[kt][ks],4) if kt >= 0 else F(ks), F(ks), "0" if ks == 0 else None)
        lg.wait({2: "x03", 8: "x13"}.get(i)); slot(54+i)
    tick(3)
    e(f"s_cmp_eq_u32 s37, 63\ns_cbranch_scc1 {N}_end")
    e("v_max3_f32 v40, v40, v12, v13\nv_max3_f32 v41, v40, v14, v15\nv_max3_f32 v40, v40, v14, v15"); rdw(wl[1], bufs[1])
    e("v_permlane16_swap_b32 v40, v41\nv_max_f32 v40, v40, v41\nv_max_f32 v41, v40, v41"); rdw(wl[2], bufs[2])
    e("v_permlane32_swap_b32 v40, v41\nv_max_f32 v40, v40, v41\nv_mul_f32 v40, s30, v40")
    for x in (76, 8, 10, 12, 14): e(f"v_pk_fma_f32 {v(x,2)}, {v(x,2)}, s[30:31], v[40:41] op_sel_hi:[1,0,0] neg_lo:[0,0,1] neg_hi:[0,0,1]")
    e("v_exp_f32 v76, v76\nv_exp_f32 v77, v77\nv_exp_f32 v8, v8"); cvt(e, 20, 76, 77); cvt(e, 23, 76, 77)
    e("v_exp_f32 v9, v9\nv_exp_f32 v10, v10"); m16(e, v(28,4), v(16,2), v(20,2), "0")
    e("v_exp_f32 v11, v11"); m16(e, v(SA,4), v(42,2), v(20,2), "0")
    e("v_exp_f32 v12, v12"); m16(e, v(SA+4,4), v(42,2), v(22,2), "0")
    e("v_exp_f32 v13, v13\nv_exp_f32 v14, v14\nv_exp_f32 v15, v15")
    for i in range(4): cvt(e, 24+i, 8+2*i, 9+2*i)
    zero(8, 4)
    mfma(e, v(28,4), v(16,4), v(24,4)); zero(12, 4)
    mfma(e, v(SA,4), v(SB,4), v(24,4)); zero(20, 4)
    mfma(e, v(SA+4,4), v(SB+4,4), v(24,4)); e("v_rcp_f32 v40, v28"); zero(16, 4); e("s_mov_b64 exec, s[44:45]")
    for h in range(2):
        for i in (2*h, 2*h+1): e(f"v_pk_mul_f32 {v(SA+2*i,2)}, {v(SA+2*i,2)}, v[40:41] op_sel_hi:[1,0]" if h else f"v_mul_f32 v{SA+2*i}, v{SA+2*i}, v40\nv_mul_f32 v{SA+2*i+1}, v{SA+2*i+1}, v40")
        for i in (2*h, 2*h+1): cvt(e, 76+i, SA+2*i, SA+2*i+1)
        if cfg['o64']: lg.op(f"ds_write_b64 v{vO}, {v(76+2*h,2)} offset:{8*h}", 'o')
    if not cfg['o64']: lg.op(f"ds_write_b128 v{vO}, v[76:79]", 'o')
    if w < 3: e(f"s_mov_b64 exec, s[46:47]\nv_mov_b32 v41, -1\nbuffer_store_dword v41, v{vM}, {s(WS,4)}, s58 offen {st}")
    e("s_mov_b64 exec, -1"); rdw(wl[3], 60); zero(24, 8); e("v_mov_b32 v43, s31")
    lg.wait('o'); e("s_barrier")
    tick(4)
    rd(68, 0, 'o0'); rd(72, 1024, 'o1'); e("v_mov_b32 v79, s31")
    acc = lambda t: 8 + 12*(t//3 % 2) + 4*(t % 3)
    for i in range(12): pre[max(i, wo.index(wl[i//2]))].append(rh(wl[4+i//2], bufs[i//2 % 4], i % 2))
    for j in range(9):
        t = wo[2*j][1]; u = t//3; pk = 76 if u == 1 else 40
        val[2*j+3] += [ad(acc(t)), ad(acc(t)+1)] if j < 8 else [pka(acc(t))]; val[2*j+4-(j % 3 == 2)].append(cv(pk + t % 3, acc(t), acc(t)+1))
        if j % 3 == 2: pre[2*j+4].append(f"buffer_store_dwordx4 {v(pk,4)}, v{vP}, {s(WS,4)}, s{60+u} offen {st}")
    for p, r in zip((8, 10, 6, 8, 12, 14), (16, 18, 8, 10, 12, 14)): val[p].append(z(r))
    if w < 3: val[20] += [f"v_and_b32 v33, 16, v{vL}\nv_bfe_u32 v32, v{vL}, 5, 3\nv_lshlrev_b32 v33, v33, s55\nv_mov_b32 v63, 0"] + [f"v_cmp_eq_u32 vcc, {j}, v32\nv_cndmask_b32 v{60+j}, 0, v33, vcc" for j in range(3)]
    pre[16].append("s_add_u32 s43, s43, 4\ns_add_u32 s37, s37, 1"); pre[17].append(f"s_add_u32 s38, s38, {0 if cfg.get('fix') else 16384}\ns_add_u32 s42, s42, 4096")
    for p, k in enumerate(wo):
        lg.wait(f"o{k[2]}", k)
        sm(acc(k[1]), 68+4*k[2], v(bufs[wl.index(k) % 4],8) if k in LOP else wop(k))
        if p < 17: lg.wait(f"o{wo[p+1][2]}", wo[p+1])
        slot(p)
    for p in range(18, 22): slot(p)
    assert not pre and not val
    def pload():
        for i in range(4): e(f"buffer_load_dwordx4 {v(44+4*i,4)}, v{vL}, {s(WS,4)}, s59 offen offset:{1024*i} sc1")
    early = False
    tick(5)
    if w < 3:
        l, d = e.uid("pc"), e.uid("pd")
        if not early:
            e(f"s_waitcnt vmcnt({cfg['w1'][w]})" + ("\ns_barrier" if cfg['bp'] else ""))
            tick(10)
            pload()
        lg.all()
        M = ["s[48:49]", "s[50:51]", "s[94:95]", "vcc"]
        e(f"s_mov_b32 s29, 0\n{l}:")
        for i in range(4):
            e(f"s_waitcnt vmcnt({3-i})"); mfma(e, v(64,4), v(44+4*i,4), v(60,4), None if i else "0"); e(f"v_cmp_ne_u32 {M[i]}, s31, v{47+4*i}")
            if i == 2: e("s_or_b64 s[68:69], s[48:49], s[50:51]")
        e(f"s_or_b64 s[68:69], s[68:69], s[94:95]\ns_or_b64 s[68:69], s[68:69], vcc\ns_cbranch_scc0 {d}")
        for i in range(4): e(f"s_mov_b64 exec, {M[i]}\nbuffer_load_dwordx4 {v(44+4*i,4)}, v{vL}, {s(WS,4)}, s59 offen offset:{1024*i} sc1")
        e(f"s_mov_b64 exec, -1\ns_add_u32 s29, s29, 1\ns_add_u32 s91, s91, 1\ns_cmp_lt_u32 s29, s{sDead}\ns_cbranch_scc1 {l}\ns_mov_b32 s{sDead}, 0\ns_waitcnt vmcnt(0)\n{d}:")
        tick(6)
        zero(QA, 16)
        e(f"""v_permlane32_swap_b32 v64, v66
v_permlane32_swap_b32 v65, v67
v_add_f32 v64, v64, v66
v_add_f32 v65, v65, v67
v_cvt_pk_bf16_f32 v76, v64, v65
s_mov_b64 exec, s[46:47]
buffer_store_dword v76, v{vM}, {s(WS,4)}, s57 offen {st}
s_mov_b64 exec, -1""")
        rdw(('Q',2*w,0), SA); rdw(('Q',2*w,1), SB)
    else:
        e("s_waitcnt vmcnt(0)\ns_barrier" if cfg['bp'] else "s_waitcnt vmcnt(5)"); tick(10)
        e(f"s_cmp_ge_u32 s37, 63\ns_cbranch_scc1 {N}_kv\nv_cmp_eq_u32 vcc, 0, v{vM}\ns_cbranch_vccz {N}_kv\ns_add_u32 s90, s90, 1\ns_add_u32 s41, s43, 4\nv_mov_b32 v76, 0"); wait_flags(e, 76, "s41", 77, sleep=1)
        e.lab(N + "_kv"); tick(6); prep()
    rot = f"s_mov_b32 s{sT}, s56\ns_mov_b32 s56, s57\ns_mov_b32 s57, s58\ns_mov_b32 s58, s{sT}"
    e(rot + "\ns_add_u32 s31, s31, 1")
    e(f"s_add_u32 s40, s56, {2048*w}")
    if w < 3: kdma(); e(f"s_waitcnt vmcnt({max(NK[w] - cfg['w2x'], 0)})")
    e("s_barrier"); gload()
    if cfg['stamp'] and w == cfg.get('tw', 0) and cfg.get('ticks'):
        tk = cfg['ticks']; tick(7); e(f"s_waitcnt lgkmcnt(0)\ns_cmp_lt_u32 s37, 9\ns_cbranch_scc1 {N}_step\ns_cmp_ge_u32 s37, 59\ns_cbranch_scc1 {N}_step")
        for i in range(len(tk)-1): e(f"s_sub_u32 s{sT}, s{tr(tk[i+1])}, s{tr(tk[i])}\ns_add_u32 s{84+i}, s{84+i}, s{sT}")
    e(f"s_branch {N}_step")
    e.lab(N + "_end")
    if w < 3: e(f"s_mov_b64 exec, s[46:47]\nv_mov_b32 v40, -1\nbuffer_store_dword v40, v{vM}, {s(WS,4)}, s58 offen {st}\ns_mov_b64 exec, -1")
    e("s_waitcnt lgkmcnt(0)" + (" vmcnt(0)" if w < 3 else "") + "\ns_barrier")
    if w == 3:
        e(f"s_lshr_b32 s41, s42, 10\ns_sub_u32 s41, s41, {(KM>>10)-F_M}\ns_waitcnt vmcnt(0)\nv_mov_b32 v76, 1\ns_mov_b64 exec, 1")
        e(f"buffer_store_dword v76, off, {s(WS,4)}, s41 sc1\ns_mov_b64 exec, -1")
    e("s_waitcnt vmcnt(0)\ns_barrier")
    if cfg['stamp']:
        e("s_lshl_b32 s92, s36, 2\ns_add_u32 s92, s92, 4"); stamp(e, "s92", 1)
    e(rot + f"\ns_add_u32 s36, s36, 1\ns_cmp_lt_u32 s36, {cfg['layers']}\ns_cbranch_scc1 {N}_layer")
    if cfg['stamp']:
        for i in range(8): e(f"v_mov_b32 v{8+i}, s{84+i}")
        e(f"s_lshl_b32 s97, s2, 10\ns_add_u32 s97, s97, {STAMP+64+32*w}\ns_mov_b64 exec, 1\nbuffer_store_dwordx4 v[8:11], off, {s(WS,4)}, s97\nbuffer_store_dwordx4 v[12:15], off, {s(WS,4)}, s97 offset:16")
    e("s_branch END")
```

```python
from dsl import *
F_KV, F_M, F_O, F_X1, F_X2, F_PART, F_FIN, F_END = 0, 0x4000, 0x8000, 0xC000, 0xD800, 0xF400, 0xF000, 0x15000
PART, RING = 0x20000, 0xC0000
KVP, KVP_L = 0x100000, 0x400000
KVF, KVF_L = 0x900000, 0x10000
PQ, PQ_L = 0xA00000, 0x300000
X1, X1_L, X2 = 0x1000000, 0x240000, 0x1480000
KM, KM_L = 0x1800000, 0x1000000
KX, KX_L = 0x3800000, 0x2000000
OB, OB_L = 0x7800000, 0x1000000
STAMP = 0xA000000
WS, WT, XS, DB, OUT = 4, 8, 12, 16, 20
SPIN = 400000
sW, sDead, sT, sT2, sLds = 24, 25, 26, 27, 28
def srd(e, d, off, nbytes):
    e(f"s_load_dwordx2 {s(d,2)}, s[0:1], {off}\ns_mov_b32 s{d+2}, {nbytes}\ns_mov_b32 s{d+3}, 0x20000\ns_waitcnt lgkmcnt(0)")
def wait_flags(e, vaddr, soff, vt, srd_=WS, sleep=2):
    l, d = e.uid("wf"), e.uid("wd")
    e(f"""s_mov_b32 s29, 0
{l}:
buffer_load_dword v{vt}, v{vaddr}, {s(srd_,4)}, {soff} offen sc1
s_add_u32 s29, s29, 1
s_waitcnt vmcnt(0)
v_cmp_eq_u32 vcc, 0, v{vt}
s_cbranch_vccz {d}
s_sleep {sleep}
s_cmp_lt_u32 s29, s{sDead}
s_cbranch_scc1 {l}
s_mov_b32 s{sDead}, 0
{d}:""")
def signal(e, soff, vt, srd_=WS, val="1", barrier=True):
    d = e.uid("sg")
    e("s_waitcnt vmcnt(0)")
    if barrier: e(f"s_barrier\ns_cmp_lg_u32 s{sW}, 0\ns_cbranch_scc1 {d}")
    e(f"""v_mov_b32 v{vt}, {val}
s_mov_b64 exec, 1
buffer_store_dword v{vt}, off, {s(srd_,4)}, {soff} sc1
s_mov_b64 exec, -1
{d}:""")
def wreg(i, vbase, n=4):
    return a_(i, n) if i < 256 else v(vbase + i - 256, n)
def load_units(e, units, half, sbase=None):
    batches = []; cur = []; n = 0
    for u in units:
        k = len(u[0]) * 1024
        if n + k > half: batches.append(cur); cur = []; n = 0
        cur.append((u, n)); n += k
    batches.append(cur)
    def issue(b):
        c = 0
        for u, off in batches[b]:
            for i, (va, so, sr) in enumerate(u[0]):
                e(f"s_add_u32 m0, s{sLds}, {(b % 2) * half + off + i * 1024}\ns_mov_b32 s{sT}, {so}")
                e(f"buffer_load_dwordx4 v{va}, {s(sr,4)}, s{sT} offen lds"); c += 1
        return c
    issue(0)
    for b in range(len(batches)):
        c = issue(b + 1) if b + 1 < len(batches) else 0
        e(f"s_waitcnt vmcnt({c})")
        for u, off in batches[b]:
            for dst, va, imm in u[1]: e(f"ds_read_b64_tr_b16 {dst}, v{va} offset:{(b % 2) * half + off + imm}")
        e("s_waitcnt lgkmcnt(0)")
def tr_addr(e, vd, rowbytes, vt, vl):
    e(f"""v_lshrrev_b32 v{vd}, 4, v{vl}
v_bfe_u32 v{vt}, v{vl}, 2, 2
v_lshl_add_u32 v{vd}, v{vd}, 3, v{vt}
v_mul_u32_u24 v{vd}, {rowbytes}, v{vd}
v_and_b32 v{vt}, 3, v{vl}
v_lshl_add_u32 v{vd}, v{vt}, 3, v{vd}
v_add_u32 v{vd}, s{sLds}, v{vd}""")
def divmod_v(e, vq, vr, vx, d):
    m = (65536 + d - 1) // d
    assert all((x * m) >> 16 == x // d for x in range(512))
    e(f"v_mul_u32_u24 v{vq}, {m}, v{vx}\nv_lshrrev_b32 v{vq}, 16, v{vq}\nv_mul_u32_u24 v{vr}, {d}, v{vq}\nv_sub_u32 v{vr}, v{vx}, v{vr}")
def xlane(e, op, x, t, dpp8=False):
    if dpp8: e(f"{op} v{x}, v{x}, v{x} row_ror:8 row_mask:0xf bank_mask:0xf")
    for sw in ("v_permlane16_swap_b32", "v_permlane32_swap_b32"):
        e(f"v_mov_b32 v{t}, v{x}\n{sw} v{x}, v{t}\n{op} v{x}, v{x}, v{t}")
def ln_consts(e, vg, vw, vl, vt):
    e(f"""v_and_b32 v{vg}, 7, v{vl}
s_lshl_b32 s{sT}, s{sW}, 3
v_add_u32 v{vg}, s{sT}, v{vg}
v_and_b32 v{vw}, 15, v{vg}
v_lshlrev_b32 v{vw}, 4, v{vw}
v_mul_u32_u24 v{vg}, 1152, v{vg}
v_lshrrev_b32 v{vt}, 3, v{vl}
v_lshl_add_u32 v{vg}, v{vt}, 4, v{vg}
v_lshl_add_u32 v{vw}, v{vt}, 8, v{vw}
s_lshr_b32 s{sT}, s{sW}, 1
s_mul_i32 s{sT}, s{sT}, 18432
v_add_u32 v{vw}, s{sT}, v{vw}""")
def ln_load(e, R0, vg, srd_, soff, sc="sc1"):
    for i in range(9): e(f"buffer_load_dwordx4 {v(R0+4*i,4)}, v{vg}, {s(srd_,4)}, {soff} offen offset:{128*i} {sc}")
def ln_math(e, R0, T):
    a, b, t, u = T, T + 1, T + 2, T + 3
    e(f"s_mov_b32 s{sT}, 0x3f803f80\nv_mov_b32 v{a}, 0\nv_mov_b32 v{b}, 0")
    for i in range(36):
        if i % 4 == 0: e(f"s_waitcnt vmcnt({8 - i // 4})")
        e(f"v_dot2_f32_bf16 v{a}, v{R0+i}, s{sT}, v{a}\nv_dot2_f32_bf16 v{b}, v{R0+i}, v{R0+i}, v{b}")
    xlane(e, "v_add_f32", a, t, True); xlane(e, "v_add_f32", b, t, True)
    e(f"""v_mul_f32 v{a}, 0x3ae38e39, v{a}
v_mul_f32 v{b}, 0x3ae38e39, v{b}
v_fma_f32 v{b}, -v{a}, v{a}, v{b}
v_max_f32 v{b}, 0, v{b}
v_cvt_pk_bf16_f32 v{t}, v{a}, v{b}
v_lshlrev_b32 v{a}, 16, v{t}
v_and_b32 v{b}, 0xffff0000, v{t}
v_add_f32 v{b}, 0x3727c5ac, v{b}
v_cvt_pk_bf16_f32 v{b}, v{b}, v{b}
v_lshlrev_b32 v{b}, 16, v{b}
v_sqrt_f32 v{b}, v{b}
v_cvt_pk_bf16_f32 v{b}, v{b}, v{b}
v_lshlrev_b32 v{b}, 16, v{b}
v_rcp_f32 v{t}, v{b}
v_mul_f32 v{a}, v{a}, v{t}
v_sub_f32 v{a}, 0, v{a}""")
    for i in range(36):
        p = T + 4 + 2 * (i % 2)
        e(f"""v_lshlrev_b32 v{p}, 16, v{R0+i}
v_and_b32 v{p+1}, 0xffff0000, v{R0+i}
v_pk_fma_f32 {v(p,2)}, {v(p,2)}, {v(t,2)}, {v(a,2)} op_sel_hi:[1,0,0]
v_cvt_pk_bf16_f32 v{R0+i}, v{p}, v{p+1}""")
def ln_write(e, R0, vw):
    for i in range(9): e(f"ds_write_b128 v{vw}, {v(R0+4*i,4)} offset:{2048*i}")
def mfma(e, d, a, b, c=None): e(f"v_mfma_f32_16x16x32_bf16 {d}, {a}, {b}, {d if c is None else c}")
def cvt(e, d, x, y): e(f"v_cvt_pk_bf16_f32 v{d}, v{x}, v{y}")
def gemm_x(e, vl16, XB, body):
    rd = lambda ks: e(f"ds_read_b128 {v(XB+8*(ks%2),4)}, v{vl16} offset:{ks*1024}\nds_read_b128 {v(XB+8*(ks%2)+4,4)}, v{vl16} offset:{(18+ks)*1024}")
    rd(0); rd(1)
    for ks in range(18):
        e(f"s_waitcnt lgkmcnt({2 if ks < 17 else 0})")
        body(ks, [v(XB + 8 * (ks % 2), 4), v(XB + 8 * (ks % 2) + 4, 4)])
        if ks + 2 < 18: rd(ks + 2)
def resid_out(e, acc, xr, t):
    for j in range(2):
        e(f"""v_lshlrev_b32 v{t}, 16, v{xr+j}
v_and_b32 v{t+1}, 0xffff0000, v{xr+j}
v_add_f32 v{t}, v{t}, v{acc+2*j}
v_add_f32 v{t+1}, v{t+1}, v{acc+2*j+1}
v_cvt_pk_bf16_f32 v{xr+j}, v{t}, v{t+1}""")
def lst(e, cfg, k, vt, first=0):
    if not cfg['stamp']: return
    d = e.uid('ls')
    if first: e(f's_cmp_ge_u32 s37, {first}\ns_cbranch_scc1 {d}')
    e(f's_lshl_b32 s92, s36, 6\ns_add_u32 s92, s92, {192+4*k}'); stamp(e, 's92', 1, vt); e(d + ':')
def stamp(e, idx, en, vt=7):
    if not en: return
    d = e.uid("st")
    e(f"""s_cmp_lg_u32 s{sW}, 0
s_cbranch_scc1 {d}
s_memrealtime s[98:99]
s_lshl_b32 s97, s2, 10
s_add_u32 s97, s97, {STAMP}
s_add_u32 s97, s97, {idx}
s_waitcnt lgkmcnt(0)
v_mov_b32 v{vt}, s98
s_mov_b64 exec, 1
buffer_store_dword v{vt}, off, {s(WS,4)}, s97
s_mov_b64 exec, -1
{d}:""")
```

```python
import sys, json
from gen_common import *
from gen_a import role_p1, role_p2
from gen_b import role_p3, role_p4
from gen_ch import chain_setup, chain_wave
KN = "interleave_layers__linear_attn_block__memory_aug_recurrent_mem_tr__prompt_kernel"
DEF = dict(layers=2, stamp=0, ng1=22, g1_first=19, n1_l3=3, ng2=4, ns3=4, ng4=5, early1=0, w1=[2,0,0], dp2=0, wait2=0, ksig=9, w2x=0, b0=2, pw=8, o64=1, bp=0, pf=43, sl3=1, ps=96, pb=14, pb3=10, b3=45, vmd=1, spin=SPIN)
def far(e, name):
    e.lab(name + "_j"); e(f"s_branch {name}")
def build(**kw):
    cfg = dict(DEF); cfg.update(kw)
    e = Asm()
    e("s_cmp_ge_u32 s2, 256\ns_cbranch_scc0 START\ns_endpgm\nSTART:")
    srd(e, WS, 96, 0x10000000); srd(e, DB, 88, 256)
    e(f"""v_lshrrev_b32 v1, 6, v0
v_and_b32 v0, 63, v0
v_readfirstlane_b32 s{sW}, v1
v_lshlrev_b32 v1, 4, v0
s_mov_b32 s{sDead}, {cfg['spin']}
s_and_b32 s40, s2, 7
s_lshr_b32 s41, s2, 3
s_mov_b32 s34, 0""")
    for i in range(84, 92): e(f"s_mov_b32 s{i}, 0")
    stamp(e, 12, cfg['stamp'])
    e(f"""s_mov_b32 s52, s41
s_cmp_eq_u32 s40, 0
s_cbranch_scc1 CH
s_cmp_ge_u32 s40, 6
s_cbranch_scc1 R67
s_sub_u32 s40, s40, 1
s_lshl_b32 s40, s40, 5
s_add_u32 s40, s40, s41
s_lshr_b32 s52, s40, 2
s_and_b32 s53, s40, 3
s_lshr_b32 s32, s40, 3
s_and_b32 s33, s40, 7
s_mov_b32 s34, 1
s_cmp_lt_u32 s40, 128
s_cbranch_scc1 P1
s_cmp_lt_u32 s41, 24
s_cselect_b32 s34, 2, 0
s_cmp_ge_u32 s41, 12
s_cselect_b32 s52, 4, 3
s_cselect_b32 s53, 12, 0
s_sub_u32 s53, s41, s53
s_branch P1
R67:
s_cmp_eq_u32 s40, 7
s_cbranch_scc1 R7
s_mov_b32 s32, 20
s_sub_u32 s33, s41, 24
s_cmp_ge_u32 s41, 24
s_cbranch_scc1 P1
s_cmp_ge_u32 s41, 12
s_cselect_b32 s32, 1, 0
s_mul_i32 s33, s32, 12
s_sub_u32 s33, s41, s33
s_branch P4
R7:
s_mov_b32 s32, 2
s_mov_b32 s33, s41
s_cmp_lt_u32 s41, 12
s_cbranch_scc1 P4
s_mov_b32 s32, 21
s_sub_u32 s33, s41, 12
s_cmp_lt_u32 s41, 20
s_cbranch_scc1 P1
s_sub_u32 s41, s41, 20
s_mul_i32 s32, s41, 86
s_lshr_b32 s32, s32, 8
s_mul_i32 s33, s32, 3
s_sub_u32 s33, s41, s33
s_branch P2""")
    role_p1(e, cfg); role_p3(e, cfg); role_p2(e, cfg); role_p4(e, cfg)
    e.lab("END"); e("s_waitcnt vmcnt(0)\ns_endpgm")
    chain_setup(e, cfg)
    for md in "nf":
        for w in range(4): e.fence(); chain_wave(e, cfg, md, w)
    head = "".join(l for l in open("cdna_kernels/" + KN[:-7] + ".s.ref") if l.startswith(";") and "@launch" not in l)
    return head + f"""; @launch grid=(256,1,1) block=(256,1,1) lds=163840
.amdgcn_target "amdgcn-amd-amdhsa--gfx950"
.text
.globl {KN}
.p2align 8
.type {KN},@function
{KN}:
""" + e.text() + f"""s_endpgm
.section .rodata,"a"
.p2align 6
.amdhsa_kernel {KN}
  .amdhsa_next_free_vgpr 512
  .amdhsa_next_free_sgpr 102
  .amdhsa_accum_offset 256
  .amdhsa_group_segment_fixed_size 0
  .amdhsa_kernarg_size 104
  .amdhsa_user_sgpr_count 2
  .amdhsa_user_sgpr_kernarg_segment_ptr 1
  .amdhsa_system_sgpr_workgroup_id_x 1
.end_amdhsa_kernel
"""
if __name__ == "__main__":
    out = sys.argv[1]; kw = json.loads(sys.argv[2]) if len(sys.argv) > 2 else {}
    open(out, "w").write(build(**kw))
```

```python
from gen_common import *
def phi(e, x, t):
    e(f"""v_min_f32 v{t}, 0, v{x}
v_mul_f32 v{t}, 0x3fb8aa3b, v{t}
v_exp_f32 v{t}, v{t}
v_max_f32 v{x}, 0, v{x}
v_add_f32 v{x}, 0x358637bd, v{x}
v_add_f32 v{x}, v{x}, v{t}""")
def role_p1(e, cfg):
    NG, G0, N3 = cfg['ng1'], cfg['g1_first'], cfg['n1_l3']
    W = lambda ks, t: wreg((ks * 4 + t) * 4, 224)
    W2 = lambda ks, t, hi: wreg((ks * 4 + t) * 4 + 2 * hi, 224, 2)
    e.lab("P1")
    srd(e, WT, 8, 576 * 3456); srd(e, XS, 0, 2048 * 1152)
    e(f"s_mul_i32 s{sLds}, s{sW}, 48\ns_lshl_b32 s35, s33, 2\ns_add_u32 s35, s35, s{sW}\ns_mul_i32 s40, s33, 144\ns_mul_i32 s42, s{sW}, {8*3456}\ns_add_u32 s40, s40, s42\ns_mul_i32 s42, s{sW}, 5120")
    ln_consts(e, 2, 3, 0, 4)
    e(f"s_mul_i32 s41, s32,/*rows*/ 36864".replace("/*rows*/ ", ""))
    ln_load(e, 8, 2, XS, "s41", "")
    for d in range(5):
        e(f"v_add_u32 v50, {64*d}, v0"); divmod_v(e, 51, 52, 50, 40)
        e("v_min_u32 v52, 35, v52"); divmod_v(e, 53, 54, 52, 12); divmod_v(e, 55, 50, 54, 3)
        e(f"""v_mul_u32_u24 v51, 3456, v51
v_mul_u32_u24 v53, 1152, v53
v_mul_u32_u24 v55, {cfg.get("alg", 36)}, v55
v_lshl_add_u32 v53, v50, 4, v53
v_add3_u32 v53, v53, v55, s40
v_add_u32 v{56+d}, v51, v53""")
    tr_addr(e, 61, 640, 50, 0)
    e("v_and_b32 v50, 3, v0\nv_min_u32 v51, 2, v50\nv_mul_u32_u24 v51, 192, v51\nv_lshlrev_b32 v50, 3, v50\nv_sub_u32 v62, v61, v50\nv_add3_u32 v62, v62, v51, 32")
    e("v_add_u32 v64, 81920, v61\nv_add_u32 v65, 81920, v62")
    bat = [range(b, min(b+4, 18)) for b in range(0, 18, 4)]
    def issue(b):
        for ks in bat[b]:
            for d in range(5): e(f"s_add_u32 m0, s42, {(ks % 8)*20480 + d*1024}\ns_mov_b32 s{sT}, {ks*32*3456}\nbuffer_load_dwordx4 v{56+d}, {s(WT,4)}, s{sT} offen lds")
    issue(0); issue(1)
    for b in range(5):
        if b == 4: e("v_mov_b32 v4, 128"); wait_flags(e, 4, 0, 5, DB); ln_raddr(e, 7, 0, 5)
        e(f"s_waitcnt vmcnt({5*len(bat[b+1]) if b < 4 else 0})\ns_barrier")
        for ks in bat[b]:
            for t in range(4):
                for hi in range(2): e(f"ds_read_b64_tr_b16 {W2(ks, t, hi)}, v{61 + 3*(b % 2) + (t == 3)} offset:{(ks % 4)*20480 + (t % 3)*192 + hi*2560}")
        e("s_waitcnt lgkmcnt(0)")
        if b < 3: e("s_barrier"); issue(b+2)
    e(f"""v_and_b32 v50, 15, v0
v_lshrrev_b32 v51, 4, v0
v_cmp_gt_u32 s[44:45], 8, v50
v_cmp_eq_u32 s[46:47], 10, v50
v_cmp_gt_u32 s[48:49], 2, v50
v_cmp_eq_u32 s[50:51], 1, v51
s_lshl_b32 s{sT}, s{sW}, 7
s_add_u32 s{sT}, s{sT}, 40960
v_lshlrev_b32 v5, 4, v51
v_lshl_add_u32 v5, v50, 1, v5
v_add_u32 v5, s{sT}, v5
v_lshl_add_u32 v6, v50, 2, s{sT}
v_mul_u32_u24 v63, 12, v0
v_min_u32 v4, 23, v0
v_lshlrev_b32 v4, 8, v4
s_mov_b32 s36, 0
s_mov_b32 s37, s32
s_mov_b32 s38, {NG}
s_barrier""")
    KV = 112; Q, K, V, T = 64, 72, 80, 88
    lst(e, cfg, 0, 50); e.lab("P1_layer")
    for i in range(16): e(f"v_mov_b32 v{KV+i}, 0")
    e.lab("P1_seg")
    e("s_cmp_eq_u32 s36, 0\ns_cbranch_scc1 P1_have")
    e(f"s_lshl_b32 s41, s37, 2\ns_add_u32 s41, s41, {F_X2}"); wait_flags(e, 4, "s41", 50); lst(e, cfg, 1, 50)
    e(f"s_mul_i32 s41, s37, 36864\ns_add_u32 s41, s41, {X2}"); ln_load(e, 8, 2, WS, "s41"); e("s_waitcnt vmcnt(0)")
    e.lab("P1_have")
    ln_math(e, 8, 44, False); ln_write(e, 8, 3)
    e("s_waitcnt lgkmcnt(0)\ns_barrier\ns_add_u32 s39, s37, s38\ns_cmp_lg_u32 s36, 0\ns_cbranch_scc1 P1_nopf\ns_cmp_ge_u32 s39, 64\ns_cbranch_scc1 P1_nopf\ns_mul_i32 s41, s39, 36864")
    ln_load(e, 8, 2, XS, "s41", "")
    e.lab("P1_nopf")
    def body(ks, x):
        c = "0" if ks == 0 else None
        for mt in range(2):
            mfma(e, v(Q + 4 * mt, 4), W(ks, 0), x[mt], c)
            for t, r in ((1, K), (2, V), (3, T)): mfma(e, v(r + 4 * mt, 4), x[mt], W(ks, t), c)
    gemm_x(e, 7, 96, body)
    e("s_barrier")
    for i in range(8):
        e(f"v_cndmask_b32 v{96+i}, v{T+i}, 1.0, s[46:47]"); phi(e, T + i, 44 + i % 2)
        e(f"v_cndmask_b32 v{T+i}, v{96+i}, v{T+i}, s[44:45]")
    for i in range(4): cvt(e, 96 + i, T + 2 * i, T + 2 * i + 1)
    e("s_mov_b64 exec, s[48:49]")
    for i in range(4): e(f"ds_write_b16 v5, v{96+i} offset:{(i//2)*64+(i%2)*8}\nds_write_b16_d16_hi v5, v{96+i} offset:{(i//2)*64+(i%2)*8+4}")
    e("s_mov_b64 exec, -1")
    for i in range(8): phi(e, K + i, 44 + i % 2)
    for i in range(4): cvt(e, 100 + i, K + 2 * i, K + 2 * i + 1); cvt(e, 104 + i, V + 2 * i, V + 2 * i + 1)
    e("s_waitcnt lgkmcnt(0)\nds_read_b32 v54, v6\nds_read_b32 v58, v6 offset:64")
    mfma(e, v(KV, 4), v(100, 4), v(104, 4)); mfma(e, v(KV + 4, 4), v(96, 4), v(104, 4))
    mfma(e, v(KV + 8, 4), v(100, 4), v(96, 4)); mfma(e, v(KV + 12, 4), v(96, 4), v(96, 4))
    for i in range(8): phi(e, Q + i, 44 + i % 2)
    for i in range(4): cvt(e, 52 + (i // 2) * 4 + i % 2, Q + 2 * i, Q + 2 * i + 1)
    e(f"""s_lshl_b32 s41, s37, 5
s_add_u32 s41, s41, s35
s_mul_i32 s41, s41, 1536
s_mul_i32 s{sT}, s36, {PQ_L}
s_add_u32 s41, s41, s{sT}
s_add_u32 s41, s41, {PQ}
s_waitcnt lgkmcnt(0)
buffer_store_dwordx3 v[52:54], v63, {s(WS,4)}, s41 offen sc1
buffer_store_dwordx3 v[56:58], v63, {s(WS,4)}, s41 offen offset:768 sc1
s_waitcnt vmcnt(2)
s_mov_b32 s37, s39
s_cmp_lt_u32 s37, 64
s_cbranch_scc1 P1_seg"""); lst(e, cfg, 2, 50)
    e(f"""s_mul_i32 s42, s36, {KVP_L}
s_lshl_b32 s{sT}, s35, 12
s_add_u32 s42, s42, s{sT}
s_add_u32 s42, s42, {KVP}
s_lshl_b32 s43, s36, 2
s_mul_i32 s{sT}, s33, {128*NG}
s_add_u32 s43, s43, s{sT}
s_add_u32 s43, s43, {F_PART}
s_cmp_eq_u32 s32, {NG-1}
s_cbranch_scc1 P1_fin
s_lshl_b32 s{sT}, s32, 17
s_add_u32 s41, s42, s{sT}""")
    for i in range(4): e(f"buffer_store_dwordx4 {v(KV+4*i,4)}, v1, {s(WS,4)}, s41 offen offset:{1024*i} sc1")
    e(f"s_lshl_b32 s{sT}, s32, 7\ns_add_u32 s41, s43, s{sT}"); signal(e, "s41", 50)
    e("s_cmp_eq_u32 s34, 1\ns_cbranch_scc1 P3\ns_cmp_eq_u32 s34, 0\ns_cbranch_scc1 P1_next\ns_mov_b32 s32, s52\ns_mov_b32 s33, s53\ns_barrier\ns_branch P4")
    e.lab("P1_fin")
    e(f"""s_cmp_eq_u32 s36, 0
s_cselect_b32 s40, 0, {G0}
v_max_u32 v50, s40, v0
v_min_u32 v50, {NG-2}, v50
v_lshlrev_b32 v50, 7, v50"""); wait_flags(e, 50, "s43", 51, sleep=1); lst(e, cfg, 3, 51)
    RB = [128, 144, 160, 176, 192, 208, 64, 80, 96, 8, 24]
    e("v_and_b32 v51, 15, v0\nv_subrev_u32 v51, 8, v51\nv_cmp_gt_u32 vcc, 3, v51\nv_or_b32 v44, 0x40000000, v1\nv_cndmask_b32 v45, v44, v1, s[50:51]\nv_cndmask_b32 v46, v44, v1, vcc\nv_or_b32 v47, v45, v46\nv_mov_b32 v44, v1")
    for NB in (11, 2):
        e.lab(f"P1_red{NB}")
        if NB > 2: e("s_cmp_lg_u32 s36, 0\ns_cbranch_scc1 P1_red2")
        for j in range(NB):
            e(f"s_add_u32 s{sT2}, s40, {j}\ns_lshl_b32 s{sT}, s{sT2}, 17\ns_add_u32 s41, s42, s{sT}\ns_cmp_lt_u32 s{sT2}, {NG-1}\ns_cselect_b32 s{sT}, 0, 0x40000000")
            for i in range(4): e(f"v_or_b32 v{48+i}, s{sT}, v{44+i}\nbuffer_load_dwordx4 {v(RB[j]+4*i,4)}, v{48+i}, {s(WS,4)}, s41 offen offset:{1024*i} sc1")
        for j in range(NB):
            e(f"s_waitcnt vmcnt({4*(NB-1-j)})")
            for i in range(0, 16, 2): e(f"v_pk_add_f32 {v(KV+i,2)}, {v(KV+i,2)}, {v(RB[j]+i,2)}")
        e(f"s_add_u32 s40, s40, {NB}\ns_cmp_lt_u32 s40, {NG-1}\ns_cbranch_scc1 P1_red{NB}")
        if NB > 2: e("s_branch P1_rd")
    e.lab("P1_rd")
    for f in range(2):
        cvt(e, 52 + 4 * f, KV + 8 * f, KV + 8 * f + 1); cvt(e, 53 + 4 * f, KV + 8 * f + 2, KV + 8 * f + 3); cvt(e, 54 + 4 * f, KV + 8 * f + 4, KV + 8 * f + 5)
        e(f"v_cndmask_b32 v{54+4*f}, 0, v{54+4*f}, s[50:51]\nv_mov_b32 v{55+4*f}, 0")
    e(f"""v_and_b32 v50, 3, v0
v_lshlrev_b32 v50, 2, v50
s_mov_b32 s{sT}, 0xa98a
v_lshrrev_b32 v50, v50, s{sT}
v_and_b32 v50, 15, v50
v_and_b32 v51, 48, v0
v_add_lshl_u32 v50, v50, v51, 2
ds_bpermute_b32 v56, v50, v56
ds_bpermute_b32 v57, v50, v57
ds_bpermute_b32 v58, v50, v58
s_mul_i32 s41, s36, {KVF_L}
s_lshl_b32 s{sT}, s35, 11
s_add_u32 s41, s41, s{sT}
s_add_u32 s41, s41, {KVF}
buffer_store_dwordx4 v[52:55], v1, {s(WS,4)}, s41 offen sc1
s_waitcnt lgkmcnt(0)
buffer_store_dwordx4 v[56:59], v1, {s(WS,4)}, s41 offen offset:1024 sc1
s_lshl_b32 s41, s36, 2
s_lshl_b32 s{sT}, s33, 7
s_add_u32 s41, s41, s{sT}
s_add_u32 s41, s41, {F_FIN}"""); signal(e, "s41", 50); lst(e, cfg, 4, 51)
    e.lab("P1_next")
    stamp(e, "s36", cfg['stamp'] and 0)
    e(f"""s_cmp_eq_u32 s36, {cfg['layers']-1}
s_cbranch_scc1 END
s_mov_b32 s36, 1
s_sub_u32 s37, s32, {G0}
s_add_u32 s37, s37, {64 % N3}
s_cmp_ge_u32 s37, {N3}
s_cselect_b32 s{sT}, {N3}, 0
s_sub_u32 s37, s37, s{sT}
s_mov_b32 s38, {N3}
s_branch P1_layer""")

def units48(e, va, nks, W2, soff):
    return [([(va(ks) + d, soff(ks), WT) for d in range(3)],
             [(W2(ks, t, hi), 61, t * 32 + hi * 384) for t in range(3) for hi in range(2)]) for ks in range(nks)]
def addr48(e, dst, rowfn, scol):
    for d in range(3):
        e(f"v_add_u32 v50, {64*d}, v0"); divmod_v(e, 51, 52, 50, 6)
        e("v_lshrrev_b32 v53, 3, v51\nv_and_b32 v54, 7, v51"); rowfn()
        e(f"v_mul_u32_u24 v51, 1152, v51\nv_lshl_add_u32 v51, v52, 4, v51\nv_add_u32 v{dst+d}, {scol}, v51")
def role_p2(e, cfg):
    NG = cfg['ng2']
    W = lambda ks, t: a_((ks * 3 + t) * 4, 4)
    W2 = lambda ks, t, hi: a_((ks * 3 + t) * 4 + 2 * hi, 2)
    e.lab("P2")
    srd(e, WT, 16, 576 * 1152); srd(e, XS, 0, 2048 * 1152)
    e("s_cmp_lg_u32 s2, 255\ns_cbranch_scc1 P2_noinit")
    e(f"v_mov_b32 v8, 0\nv_mov_b32 v9, 0\nv_mov_b32 v10, 0\nv_mov_b32 v11, 0\ns_lshl_b32 s41, s{sW}, 10")
    for i in range(F_END // 4096): e(f"buffer_store_dwordx4 v[8:11], v1, {s(WS,4)}, s41 offen sc1\ns_add_u32 s41, s41, 4096")
    e("s_mov_b32 s41, 128"); signal(e, "s41", 50, DB); e("s_mov_b32 s36, 0"); lst(e, cfg, 1, 51)
    e.lab("P2_noinit")
    e(f"s_mul_i32 s{sLds}, s{sW}, 40960\ns_mul_i32 s35, s33, 384\ns_mul_i32 s{sT}, s{sW}, 96\ns_add_u32 s35, s35, s{sT}")
    addr48(e, 56, lambda: e("v_lshrrev_b32 v51, 2, v54\nv_mul_u32_u24 v51, 18, v51\nv_lshl_add_u32 v51, v53, 2, v51\nv_and_b32 v54, 3, v54\nv_add_u32 v51, v51, v54"), "s35")
    addr48(e, 64, lambda: e("v_lshrrev_b32 v51, 1, v54\nv_lshl_add_u32 v51, v53, 2, v51\nv_mul_u32_u24 v51, 18, v51\nv_and_b32 v54, 1, v54\nv_add3_u32 v51, v51, v54, 16"), "s35")
    tr_addr(e, 61, 96, 50, 0)
    load_units(e, units48(e, lambda ks: 56 if ks < 16 else 64, 18, W2, lambda ks: (36 * ks if ks < 16 else 288 * (ks - 16)) * 1152), 18432)
    e("v_mov_b32 v4, 128"); wait_flags(e, 4, 0, 5, DB)
    KF, PB, XR, L, AC = 8, 72, 136, 148, 168
    e(f"""v_and_b32 v50, 15, v0
v_lshrrev_b32 v51, 4, v0
v_mul_u32_u24 v2, 1152, v50
v_lshl_add_u32 v2, v51, 3, v2
v_add_u32 v2, s35, v2
v_add_u32 v3, 18432, v2
v_mul_u32_u24 v5, 12, v0
v_and_b32 v51, 1, v51
v_cmp_eq_u32 s[44:45], 1, v51
v_min_u32 v4, 7, v0
v_lshlrev_b32 v4, 7, v4
s_and_b32 s{sT}, s{sW}, 1
s_cselect_b32 s46, 0, -1
s_cselect_b32 s47, -1, 0
s_lshl_b32 s{sT}, s{sW}, 12
v_add_u32 v6, s{sT}, v1
s_lshr_b32 s{sT}, s{sW}, 1
s_lshl_b32 s{sT}, s{sT}, 10
v_add_u32 v208, s{sT}, v1
s_mov_b32 s36, 0
s_barrier""")
    for i in range(3):
        e(f"v_add_u32 v236, {64*i}, v0"); divmod_v(e, 237, 238, 236, 6)
        e(f"v_mul_u32_u24 v237, 1152, v237\nv_lshl_add_u32 v237, v238, 4, v237\nv_add_u32 v{230+i}, s35, v237")
    e(f"s_mul_i32 s{sT}, s{sW}, 3072\ns_add_u32 s{sT}, s{sT}, 40960\nv_add_u32 v233, s{sT}, v1\nv_mul_u32_u24 v234, 96, v50\nv_lshrrev_b32 v236, 4, v0\nv_lshl_add_u32 v234, v236, 3, v234\nv_add_u32 v234, s{sT}, v234")
    for i in range(16): e(f"v_mov_b32 v{PB+4*i+3}, 0")
    e.lab("P2_layer")
    e(f"s_lshl_b32 s41, s36, 2\ns_add_u32 s41, s41, {F_FIN}"); wait_flags(e, 4, "s41", 200); lst(e, cfg, 5, 200)
    e(f"s_mul_i32 s41, s36, {KVF_L}\ns_lshl_b32 s{sT}, s{sW}, 14\ns_add_u32 s41, s41, s{sT}\ns_add_u32 s41, s41, {KVF}")
    for i in range(16):
        e(f"buffer_load_dwordx4 {v(KF+4*i,4)}, v1, {s(WS,4)}, s41 offen offset:{1024*(i%4)} sc1")
        if i % 4 == 3: e("s_add_u32 s41, s41, 4096")
    e("s_mov_b32 s37, s32")
    e.lab("P2_seg")
    e(f"""s_lshl_b32 s41, s37, 2
s_add_u32 s41, s41, s{sW}
s_mul_i32 s41, s41, 12288
s_mul_i32 s{sT}, s36, {PQ_L}
s_add_u32 s41, s41, s{sT}
s_add_u32 s41, s41, {PQ}""")
    for i in range(16):
        e(f"buffer_load_dwordx3 {v(PB+4*i,3)}, v5, {s(WS,4)}, s41 offen offset:{768*(i%4)} sc1")
        if i % 4 == 3: e("s_add_u32 s41, s41, 3072")
    e("s_mul_i32 s42, s37, 36864\ns_cmp_eq_u32 s36, 0\ns_cbranch_scc0 P2_x2")
    for i in range(6): e(f"buffer_load_dwordx2 {v(XR+2*i,2)}, v{2+i//3}, {s(XS,4)}, s42 offen offset:{32*(i%3)}")
    e(f"s_branch P2_xd\nP2_x2:\ns_add_u32 s41, s42, {X2}")
    for i in range(6): e(f"buffer_load_dwordx2 {v(XR+2*i,2)}, v{2+i//3}, {s(WS,4)}, s41 offen offset:{32*(i%3)} sc1")
    e.lab("P2_xd")
    def mm(u):
        e(f"s_waitcnt vmcnt({6+15-u})")
        d = AC + 8 * (u % 3)
        mfma(e, v(d, 4), v(KF + 8 * (u // 2), 4), v(PB + 4 * u, 4), "0"); mfma(e, v(d + 4, 4), v(KF + 8 * (u // 2) + 4, 4), v(PB + 4 * u, 4), "0")
    mm(0); mm(1)
    for u in range(16):
        if u + 2 < 16: mm(u + 2)
        d = AC + 8 * (u % 3); hh, mt = u // 2, u % 2; o = 192 + 4 * mt + 2 * (hh % 2)
        e(f"v_add_f32 v{d+4}, 0x358637bd, v{d+4}\nv_rcp_f32 v{d+4}, v{d+4}")
        for i in (0, 1, 2, 3, 5, 6): e(f"v_mul_f32 v{d+i}, v{d+i}, v{d+4}")
        cvt(e, o, d, d + 1); cvt(e, o + 1, d + 2, d + 3); cvt(e, L + 8 * mt + hh, d + 5, d + 6)
        if hh % 2: e(f"ds_write_b128 v6, {v(192+4*mt,4)} offset:{(mt*18+hh//2)*1024}")
    for mt in range(2):
        for i in range(4): e(f"v_cndmask_b32 v{200+4*mt+i}, v{L+8*mt+i}, v{L+8*mt+4+i}, s[44:45]")
    e(f"s_mov_b64 exec, s[46:47]\nds_write_b128 v208, v[200:203] offset:{16*1024}\nds_write_b128 v208, v[204:207] offset:{34*1024}\ns_mov_b64 exec, -1\ns_waitcnt lgkmcnt(0)\ns_barrier")
    def body(ks, x):
        for mt in range(2):
            for t in range(3): mfma(e, v(AC + 4 * (3 * mt + t), 4), W(ks, t), x[mt], "0" if ks == 0 else None)
    gemm_x(e, 1, 212, body)
    e(f"s_mul_i32 s{sT}, s36, {X1_L}\ns_add_u32 s41, s42, s{sT}\ns_add_u32 s41, s41, {X1}\ns_waitcnt vmcnt(0)")
    for i in range(6):
        resid_out(e, AC + 4 * i, XR + 2 * i, 192)
        e(f"ds_write_b64 v234, {v(XR+2*i,2)} offset:{1536*(i//3)+32*(i%3)}")
    e("s_waitcnt lgkmcnt(0)")
    for i in range(3): e(f"ds_read_b128 {v(240+4*i,4)}, v233 offset:{1024*i}")
    for i in range(3): e(f"s_waitcnt lgkmcnt({2-i})\nbuffer_store_dwordx4 {v(240+4*i,4)}, v{230+i}, {s(WS,4)}, s41 offen sc1")
    e(f"""s_lshl_b32 s41, s36, 6
s_add_u32 s41, s41, s37
s_mul_i32 s{sT}, s32, 3
s_add_u32 s{sT}, s{sT}, s33
s_lshl_b32 s{sT}, s{sT}, 7
s_add_u32 s41, s41, s{sT}
s_lshl_b32 s41, s41, 2
s_add_u32 s41, s41, {F_X1}"""); signal(e, "s41", 200); lst(e, cfg, 6, 201, 4)
    e(f"""s_add_u32 s37, s37, {NG}
s_cmp_lt_u32 s37, 64
s_cbranch_scc1 P2_seg
s_add_u32 s36, s36, 1
s_cmp_lt_u32 s36, {cfg['layers']}
s_cbranch_scc1 P2_layer
s_branch END""")
```

```python
from dsl import *
F_KV, F_M, F_O, F_X1, F_X2, F_PART, F_FIN, F_END = 0, 0x4000, 0x8000, 0xC000, 0xD800, 0xF400, 0xF000, 0x15000
PART, RING = 0x20000, 0xC0000
KVP, KVP_L = 0x100000, 0x400000
KVF, KVF_L = 0x900000, 0x10000
PQ, PQ_L = 0xA00000, 0x300000
X1, X1_L, X2 = 0x1000000, 0x240000, 0x1480000
KM, KM_L = 0x1800000, 0x1000000
KX, KX_L = 0x3800000, 0x2000000
OB, OB_L = 0x7800000, 0x1000000
STAMP = 0xA000000
WS, WT, XS, DB, OUT = 4, 8, 12, 16, 20
SPIN = 400000
sW, sDead, sT, sT2, sLds = 24, 25, 26, 27, 28
def srd(e, d, off, nbytes):
    e(f"s_load_dwordx2 {s(d,2)}, s[0:1], {off}\ns_mov_b32 s{d+2}, {nbytes}\ns_mov_b32 s{d+3}, 0x20000\ns_waitcnt lgkmcnt(0)")
def wait_flags(e, vaddr, soff, vt, srd_=WS, sleep=2):
    l, d = e.uid("wf"), e.uid("wd")
    e(f"""s_mov_b32 s29, 0
{l}:
buffer_load_dword v{vt}, v{vaddr}, {s(srd_,4)}, {soff} offen sc1
s_add_u32 s29, s29, 1
s_waitcnt vmcnt(0)
v_cmp_eq_u32 vcc, 0, v{vt}
s_cbranch_vccz {d}
s_sleep {sleep}
s_cmp_lt_u32 s29, s{sDead}
s_cbranch_scc1 {l}
s_mov_b32 s{sDead}, 0
{d}:""")
def signal(e, soff, vt, srd_=WS, val="1", barrier=True):
    d = e.uid("sg")
    e("s_waitcnt vmcnt(0)")
    if barrier: e(f"s_barrier\ns_cmp_lg_u32 s{sW}, 0\ns_cbranch_scc1 {d}")
    e(f"""v_mov_b32 v{vt}, {val}
s_mov_b64 exec, 1
buffer_store_dword v{vt}, off, {s(srd_,4)}, {soff} sc1
s_mov_b64 exec, -1
{d}:""")
def wreg(i, vbase, n=4):
    return a_(i, n) if i < 256 else v(vbase + i - 256, n)
def load_units(e, units, half, sbase=None):
    batches = []; cur = []; n = 0
    for u in units:
        k = len(u[0]) * 1024
        if n + k > half: batches.append(cur); cur = []; n = 0
        cur.append((u, n)); n += k
    batches.append(cur)
    def issue(b):
        c = 0
        for u, off in batches[b]:
            for i, (va, so, sr) in enumerate(u[0]):
                e(f"s_add_u32 m0, s{sLds}, {(b % 2) * half + off + i * 1024}\ns_mov_b32 s{sT}, {so}")
                e(f"buffer_load_dwordx4 v{va}, {s(sr,4)}, s{sT} offen lds"); c += 1
        return c
    issue(0)
    for b in range(len(batches)):
        c = issue(b + 1) if b + 1 < len(batches) else 0
        e(f"s_waitcnt vmcnt({c})")
        for u, off in batches[b]:
            for dst, va, imm in u[1]: e(f"ds_read_b64_tr_b16 {dst}, v{va} offset:{(b % 2) * half + off + imm}")
        e("s_waitcnt lgkmcnt(0)")
def tr_addr(e, vd, rowbytes, vt, vl):
    e(f"""v_lshrrev_b32 v{vd}, 4, v{vl}
v_bfe_u32 v{vt}, v{vl}, 2, 2
v_lshl_add_u32 v{vd}, v{vd}, 3, v{vt}
v_mul_u32_u24 v{vd}, {rowbytes}, v{vd}
v_and_b32 v{vt}, 3, v{vl}
v_lshl_add_u32 v{vd}, v{vt}, 3, v{vd}
v_add_u32 v{vd}, s{sLds}, v{vd}""")
def divmod_v(e, vq, vr, vx, d):
    m = (65536 + d - 1) // d
    assert all((x * m) >> 16 == x // d for x in range(512))
    e(f"v_mul_u32_u24 v{vq}, {m}, v{vx}\nv_lshrrev_b32 v{vq}, 16, v{vq}\nv_mul_u32_u24 v{vr}, {d}, v{vq}\nv_sub_u32 v{vr}, v{vx}, v{vr}")
def xlane(e, op, x, t, dpp8=False):
    if dpp8: e(f"{op} v{x}, v{x}, v{x} row_ror:8 row_mask:0xf bank_mask:0xf")
    for sw in ("v_permlane16_swap_b32", "v_permlane32_swap_b32"):
        e(f"v_mov_b32 v{t}, v{x}\n{sw} v{x}, v{t}\n{op} v{x}, v{x}, v{t}")
def ln_consts(e, vg, vw, vl, vt):
    e(f"""v_lshrrev_b32 v{vg}, 3, v{vl}
s_lshl_b32 s{sT}, s{sW}, 3
v_add_u32 v{vg}, s{sT}, v{vg}
v_and_b32 v{vw}, 3, v{vl}
v_xor_b32 v{vw}, v{vw}, v{vg}
v_and_b32 v{vw}, 15, v{vw}
v_lshlrev_b32 v{vw}, 4, v{vw}
v_mul_u32_u24 v{vg}, 1152, v{vg}
v_and_b32 v{vt}, 7, v{vl}
v_lshl_add_u32 v{vg}, v{vt}, 4, v{vg}
v_lshl_add_u32 v{vw}, v{vt}, 8, v{vw}
s_lshr_b32 s{sT}, s{sW}, 1
s_mul_i32 s{sT}, s{sT}, 18432
v_add_u32 v{vw}, s{sT}, v{vw}""")
def ln_raddr(e, vd, vl, vt):
    e(f"v_lshrrev_b32 v{vt}, 4, v{vl}\nv_xor_b32 v{vd}, v{vt}, v{vl}\nv_lshlrev_b32 v{vd}, 4, v{vd}")
def ln_load(e, R0, vg, srd_, soff, sc="sc1"):
    for i in range(9): e(f"buffer_load_dwordx4 {v(R0+4*i,4)}, v{vg}, {s(srd_,4)}, {soff} offen offset:{128*i} {sc}")
def ln_math(e, R0, T, wait=True):
    a, b, t, u = T, T + 1, T + 2, T + 3
    e(f"s_mov_b32 s{sT}, 0x3f803f80\nv_mov_b32 v{a}, 0\nv_mov_b32 v{b}, 0")
    for i in range(36):
        if wait and i % 4 == 0: e(f"s_waitcnt vmcnt({8 - i // 4})")
        e(f"v_dot2_f32_bf16 v{a}, v{R0+i}, s{sT}, v{a}\nv_dot2_f32_bf16 v{b}, v{R0+i}, v{R0+i}, v{b}")
    for m in ("quad_perm:[1,0,3,2]", "quad_perm:[2,3,0,1]", "row_half_mirror"):
        for x in (a, b): e(f"v_add_f32_dpp v{x}, v{x}, v{x} {m} row_mask:0xf bank_mask:0xf")
    e(f"""v_mul_f32 v{a}, 0x3ae38e39, v{a}
v_mul_f32 v{b}, 0x3ae38e39, v{b}
v_fma_f32 v{b}, -v{a}, v{a}, v{b}
v_max_f32 v{b}, 0, v{b}
v_cvt_pk_bf16_f32 v{t}, v{a}, v{b}
v_lshlrev_b32 v{a}, 16, v{t}
v_and_b32 v{b}, 0xffff0000, v{t}
v_add_f32 v{b}, 0x3727c5ac, v{b}
v_cvt_pk_bf16_f32 v{b}, v{b}, v{b}
v_lshlrev_b32 v{b}, 16, v{b}
v_sqrt_f32 v{b}, v{b}
v_cvt_pk_bf16_f32 v{b}, v{b}, v{b}
v_lshlrev_b32 v{b}, 16, v{b}
v_rcp_f32 v{t}, v{b}
v_mul_f32 v{a}, v{a}, v{t}
v_sub_f32 v{a}, 0, v{a}""")
    for i in range(36):
        p = T + 4 + 2 * (i % 2)
        e(f"""v_lshlrev_b32 v{p}, 16, v{R0+i}
v_and_b32 v{p+1}, 0xffff0000, v{R0+i}
v_pk_fma_f32 {v(p,2)}, {v(p,2)}, {v(t,2)}, {v(a,2)} op_sel_hi:[1,0,0]
v_cvt_pk_bf16_f32 v{R0+i}, v{p}, v{p+1}""")
def ln_write(e, R0, vw):
    for i in range(9): e(f"ds_write_b128 v{vw}, {v(R0+4*i,4)} offset:{2048*i}")
def mfma(e, d, a, b, c=None): e(f"v_mfma_f32_16x16x32_bf16 {d}, {a}, {b}, {d if c is None else c}")
def cvt(e, d, x, y): e(f"v_cvt_pk_bf16_f32 v{d}, v{x}, v{y}")
def gemm_x(e, vl16, XB, body):
    rd = lambda ks: e(f"ds_read_b128 {v(XB+8*(ks%2),4)}, v{vl16} offset:{ks*1024}\nds_read_b128 {v(XB+8*(ks%2)+4,4)}, v{vl16} offset:{(18+ks)*1024}")
    rd(0); rd(1)
    for ks in range(18):
        e(f"s_waitcnt lgkmcnt({2 if ks < 17 else 0})")
        body(ks, [v(XB + 8 * (ks % 2), 4), v(XB + 8 * (ks % 2) + 4, 4)])
        if ks + 2 < 18: rd(ks + 2)
def resid_out(e, acc, xr, t):
    for j in range(2):
        e(f"""v_lshlrev_b32 v{t}, 16, v{xr+j}
v_and_b32 v{t+1}, 0xffff0000, v{xr+j}
v_add_f32 v{t}, v{t}, v{acc+2*j}
v_add_f32 v{t+1}, v{t+1}, v{acc+2*j+1}
v_cvt_pk_bf16_f32 v{xr+j}, v{t}, v{t+1}""")
def lst(e, cfg, k, vt, first=0):
    if not cfg['stamp']: return
    d = e.uid('ls')
    if first: e(f's_cmp_ge_u32 s37, {first}\ns_cbranch_scc1 {d}')
    e(f's_lshl_b32 s92, s36, 6\ns_add_u32 s92, s92, {192+4*k}'); stamp(e, 's92', 1, vt); e(d + ':')
def stamp(e, idx, en, vt=7):
    if not en: return
    d = e.uid("st")
    e(f"""s_cmp_lg_u32 s{sW}, 0
s_cbranch_scc1 {d}
s_memrealtime s[98:99]
s_lshl_b32 s97, s2, 10
s_add_u32 s97, s97, {STAMP}
s_add_u32 s97, s97, {idx}
s_waitcnt lgkmcnt(0)
v_mov_b32 v{vt}, s98
s_mov_b64 exec, 1
buffer_store_dword v{vt}, off, {s(WS,4)}, s97
s_mov_b64 exec, -1
{d}:""")
```

```python
import sys, json
from gen_common import *
from gen_a import role_p1, role_p2
from gen_b import role_p3, role_p4
from gen_ch import chain_setup, chain_wave
KN = "interleave_layers__linear_attn_block__memory_aug_recurrent_mem_tr__prompt_kernel"
DEF = dict(layers=2, stamp=0, ng1=22, g1_first=19, n1_l3=3, ng2=4, ns3=4, ng4=5, early1=0, w1=[2,0,0], dp2=0, wait2=0, warm1=1, ksig=5, w2x=0, b0=2, pw=8, o64=1, bp=0, pf=43, sl3=1, ps=96, pb=14, pb3=10, b3=45, vmd=1, spin=SPIN)
def far(e, name):
    e.lab(name + "_j"); e(f"s_branch {name}")
def build(**kw):
    cfg = dict(DEF); cfg.update(kw)
    e = Asm()
    e("s_cmp_ge_u32 s2, 256\ns_cbranch_scc0 START\ns_endpgm\nSTART:")
    srd(e, WS, 96, 0x10000000); srd(e, DB, 88, 256)
    e(f"""v_lshrrev_b32 v1, 6, v0
v_and_b32 v0, 63, v0
v_readfirstlane_b32 s{sW}, v1
v_lshlrev_b32 v1, 4, v0
s_mov_b32 s{sDead}, {cfg['spin']}
s_and_b32 s40, s2, 7
s_lshr_b32 s41, s2, 3
s_mov_b32 s34, 0""")
    for i in range(84, 92): e(f"s_mov_b32 s{i}, 0")
    stamp(e, 12, cfg['stamp'])
    e(f"""s_mov_b32 s52, s41
s_cmp_eq_u32 s40, 0
s_cbranch_scc1 CH
""")
    if cfg['warm1']:
        srd(e, 64, 8, 576 * 3456)
        e(f"s_lshl_b32 s42, s41, 2\ns_add_u32 s42, s42, s{sW}\ns_lshl_b32 s42, s42, 14\nv_lshl_add_u32 v6, v0, 7, s42\nbuffer_load_dword v7, v6, s[64:67], 0 offen\nv_add_u32 v6, 8192, v6\nbuffer_load_dword v7, v6, s[64:67], 0 offen")
    e(f"""s_cmp_ge_u32 s40, 6
s_cbranch_scc1 R67
s_sub_u32 s40, s40, 1
s_lshl_b32 s40, s40, 5
s_add_u32 s40, s40, s41
s_lshr_b32 s52, s40, 2
s_and_b32 s53, s40, 3
s_lshr_b32 s32, s40, 3
s_and_b32 s33, s40, 7
s_mov_b32 s34, 1
s_cmp_lt_u32 s40, 128
s_cbranch_scc1 P1
s_cmp_lt_u32 s41, 24
s_cselect_b32 s34, 2, 0
s_cmp_ge_u32 s41, 12
s_cselect_b32 s52, 4, 3
s_cselect_b32 s53, 12, 0
s_sub_u32 s53, s41, s53
s_branch P1
R67:
s_cmp_eq_u32 s40, 7
s_cbranch_scc1 R7
s_mov_b32 s32, 20
s_sub_u32 s33, s41, 24
s_cmp_ge_u32 s41, 24
s_cbranch_scc1 P1
s_cmp_ge_u32 s41, 12
s_cselect_b32 s32, 1, 0
s_mul_i32 s33, s32, 12
s_sub_u32 s33, s41, s33
s_branch P4
R7:
s_mov_b32 s32, 2
s_mov_b32 s33, s41
s_cmp_lt_u32 s41, 12
s_cbranch_scc1 P4
s_mov_b32 s32, 21
s_sub_u32 s33, s41, 12
s_cmp_lt_u32 s41, 20
s_cbranch_scc1 P1
s_sub_u32 s41, s41, 20
s_mul_i32 s32, s41, 86
s_lshr_b32 s32, s32, 8
s_mul_i32 s33, s32, 3
s_sub_u32 s33, s41, s33
s_branch P2""")
    role_p1(e, cfg); role_p3(e, cfg); role_p2(e, cfg); role_p4(e, cfg)
    e.lab("END"); e("s_waitcnt vmcnt(0)\ns_endpgm")
    chain_setup(e, cfg)
    for md in "nf":
        for w in range(4): e.fence(); chain_wave(e, cfg, md, w)
    head = "".join(l for l in open("cdna_kernels/" + KN[:-7] + ".s.ref") if l.startswith(";") and "@launch" not in l)
    return head + f"""; @launch grid=(256,1,1) block=(256,1,1) lds=163840
.amdgcn_target "amdgcn-amd-amdhsa--gfx950"
.text
.globl {KN}
.p2align 8
.type {KN},@function
{KN}:
""" + e.text() + f"""s_endpgm
.section .rodata,"a"
.p2align 6
.amdhsa_kernel {KN}
  .amdhsa_next_free_vgpr 512
  .amdhsa_next_free_sgpr 102
  .amdhsa_accum_offset 256
  .amdhsa_group_segment_fixed_size 0
  .amdhsa_kernarg_size 104
  .amdhsa_user_sgpr_count 2
  .amdhsa_user_sgpr_kernarg_segment_ptr 1
  .amdhsa_system_sgpr_workgroup_id_x 1
.end_amdhsa_kernel
"""
if __name__ == "__main__":
    out = sys.argv[1]; kw = json.loads(sys.argv[2]) if len(sys.argv) > 2 else {}
    open(out, "w").write(build(**kw))
```

```python
from gen_common import *
from gen_b import unit32, m16, SC
LPAIR = [('Q',0),('Q',3),('Q',5),('Q',7)]
OPAIR = [(0,0),(0,1),(4,0),(4,1),(6,1)]
LOP = {}
for i, (m, t) in enumerate(LPAIR): LOP[(m,t,0)] = 2*i; LOP[(m,t,1)] = 2*i+1
for i, (t, t2) in enumerate(OPAIR): LOP[('O',t,t2)] = 8+2*i; LOP[('O',t+1,t2)] = 9+2*i
ROP = {}
for m in 'QKVO':
    for t in range(9):
        for x in range(2):
            if (m,t,x) not in LOP: ROP[(m,t,x)] = len(ROP)
assert len(ROP) == 54
vL, vI, vP, vM, vX, vO, vW = 1, 0, 2, 3, 4, 5, 6
A0, QA, KA, SA, SB = 8, 44, 52, 60, 68
OWN = [[0, 1, 2], [3, 4], [5, 6], [7, 8]]; U = 2; NK = [3, 3, 2]
class Lg:
    def __init__(s_, e): s_.e = e; s_.q = []
    def op(s_, txt, tag): s_.e(txt); s_.q.append(tag)
    def wait(s_, *tags):
        idx = [i for i, t in enumerate(s_.q) if t in tags]
        if not idx: return
        n = len(s_.q) - 1 - max(idx); s_.e(f"s_waitcnt lgkmcnt({n})"); s_.q = s_.q[max(idx)+1:]
    def all(s_): s_.e("s_waitcnt lgkmcnt(0)"); s_.q = []
def chain_setup(e, cfg):
    e.lab("CH")
    e(f"""s_setprio 3
s_getreg_b32 s54, hwreg(HW_REG_XCC_ID, 0, 4)
s_add_u32 s54, s54, 1
s_mul_i32 s{sLds}, s{sW}, 36864
s_add_u32 s{sLds}, s{sLds}, 16384
v_add_u32 v{vW}, s{sLds}, v1
s_lshl_b32 s{sT}, s{sW}, 3
v_lshrrev_b32 v50, 3, v0
v_add_u32 v50, s{sT}, v50
v_mul_u32_u24 v50, {cfg['ps']}, v50
v_add_lshl_u32 v50, v50, s52, 7
v_and_b32 v51, 7, v0
v_lshl_add_u32 v{vP}, v51, 4, v50
s_mul_i32 s59, s52, {cfg['ps']*128}
s_lshl_b32 s{sT}, s{sW}, 12
s_add_u32 s59, s59, s{sT}
s_add_u32 s59, s59, {PART}
s_mov_b32 s60, {PART}
s_mov_b32 s61, {PART+4096}
s_mov_b32 s62, {PART+8192}
v_and_b32 v50, 15, v0
v_cmp_gt_u32 s[46:47], 6, v50
v_lshrrev_b32 v51, 1, v50
s_mul_i32 s63, s{sW}, 3072
v_lshl_add_u32 v{vM}, v51, 10, s63
v_and_b32 v51, 1, v0
v_lshl_add_u32 v{vM}, v51, 4, v{vM}
s_lshr_b32 s{sT}, s52, 1
s_lshl_b32 s{sT}, s{sT}, 6
s_and_b32 s{sT2}, s52, 1
s_lshl_b32 s{sT2}, s{sT2}, 5
s_add_u32 s{sT}, s{sT}, s{sT2}
v_add_u32 v{vM}, s{sT}, v{vM}
v_bfe_u32 v51, v0, 4, 1
v_lshl_add_u32 v{vM}, v51, 3, v{vM}
v_lshrrev_b32 v51, 5, v0
v_lshl_add_u32 v{vM}, v51, 2, v{vM}
s_mov_b32 s56, {RING}
s_mov_b32 s57, {RING+9216}
s_mov_b32 s58, {RING+18432}
v_mov_b64 v[8:9], 0
v_mov_b64 v[10:11], 0
v_mov_b32 v12, -1""")
    for u in range(3): e(f"buffer_store_dwordx4 v[8:11], v{vP}, {s(WS,4)}, s{60+u} offen sc1")
    e(f"s_cmp_eq_u32 s{sW}, 3\ns_cbranch_scc1 CH_np\ns_mov_b64 exec, s[46:47]")
    for u in range(3): e(f"buffer_store_dword v12, v{vM}, {s(WS,4)}, s{56+u} offen sc1")
    e("s_mov_b64 exec, -1\nCH_np:\ns_lshl_b32 s41, s52, 2"); signal(e, "s41", 50, DB, "s54")
    srd(e, WT, 40, 576*8192); srd(e, XS, 48, 576*8192); srd(e, OUT, 56, 576*8192); srd(e, 64, 64, 4096*1152); srd(e, 32, 32, 9216)
    e(f"""v_lshrrev_b32 v50, 4, v0
v_bfe_u32 v51, v0, 3, 1
v_bfe_u32 v52, v0, 2, 1
v_and_b32 v53, 3, v0
v_lshl_add_u32 v54, v50, 1, v52
v_lshl_add_u32 v54, v51, 3, v54
v_lshlrev_b32 v54, 13, v54
v_lshl_add_u32 v54, v53, 4, v54
s_lshl_b32 s{sT2}, s52, 8
s_lshl_b32 s{sT}, s{sW}, 6
s_add_u32 s{sT2}, s{sT2}, s{sT}
v_add_u32 v76, s{sT2}, v54
v_lshrrev_b32 v54, 1, v50
v_lshlrev_b32 v54, 4, v54
v_lshl_add_u32 v54, v51, 2, v54
v_and_b32 v50, 1, v50
v_lshl_add_u32 v54, v50, 1, v54
v_add_u32 v54, v54, v52
v_mul_u32_u24 v54, 1152, v54
v_and_b32 v50, 1, v53
v_lshl_add_u32 v54, v50, 4, v54
s_mul_i32 s{sT2}, s52, {128*1152}
s_lshl_b32 s{sT}, s{sW}, 5
s_add_u32 s{sT2}, s{sT2}, s{sT}
v_add_u32 v78, s{sT2}, v54
v_lshrrev_b32 v50, 1, v53
v_lshl_add_u32 v77, v50, 7, v78""")
    tr_addr(e, 79, 64, 50, 0)
    def unit(m, t, h, dst):
        if m == 'O': return unit32(77 if t < 8 else 78, h*32*1152 + t*128, 64, 8*1152, dst, 79)
        return unit32(76, (2*t+h)*32*8192, {'Q': WT, 'K': XS, 'V': OUT}[m], 16*8192, dst, 79)
    us = []
    for m in 'QKV':
        for t in range(9):
            if (m,t,0) in ROP:
                for h in range(2): us.append(unit(m, t, h, lambda tn, hi: wreg(ROP[(m,t,tn)]*8 + 4*h + 2*hi, 80, 2)))
    for t in range(0, 9, 2):
        for h in range(4):
            if ('O',t,h//2) in ROP: us.append(unit('O', t, h, lambda tn, hi: wreg(ROP[('O',t+tn,h//2)]*8 + 4*(h%2) + 2*hi, 80, 2) if t+tn < 9 else None))
    load_units(e, us, 18432)
    lp = [[unit(m, t, h, lambda tn, hi: v(8 + 8*tn + 4*h + 2*hi, 2)) for h in range(2)] for m, t in LPAIR]
    lp += [[unit('O', t, 2*t2+h, lambda tn, hi: v(8 + 8*tn + 4*h + 2*hi, 2)) for h in range(2)] for t, t2 in OPAIR]
    for p, pr in enumerate(lp):
        for h in range(2):
            for i, (va, so, sr) in enumerate(pr[h][0]):
                e(f"s_add_u32 m0, s{sLds}, {p*4096+h*2048+i*1024}\ns_mov_b32 s{sT}, {so}\nbuffer_load_dwordx4 v{va}, {s(sr,4)}, s{sT} offen lds")
    for p, pr in enumerate(lp):
        e(f"s_waitcnt vmcnt({4*(8-p)})")
        for h in range(2):
            for dst, va, imm in pr[h][1]: e(f"ds_read_b64_tr_b16 {dst}, v{va} offset:{p*4096+h*2048+imm}")
        e("s_waitcnt lgkmcnt(0)")
        for i in range(4): e(f"ds_write_b128 v{vW}, {v(8+4*i,4)} offset:{p*4096+i*1024}")
        e("s_waitcnt lgkmcnt(0)")
    e(f"""v_and_b32 v50, 15, v0
s_mov_b32 s55, 0x3f80
v_lshrrev_b32 v51, 2, v50
v_lshrrev_b32 v52, 4, v0
v_and_b32 v53, 3, v0
v_lshlrev_b32 v{vX}, 8, v51
v_lshl_add_u32 v{vX}, v52, 6, v{vX}
v_lshl_add_u32 v{vX}, v53, 2, v{vX}
s_lshl_b32 s{sT}, s{sW}, 10
s_add_u32 s{sT}, s{sT}, 3072
v_add_u32 v{vX}, s{sT}, v{vX}
v_cmp_le_u32 s[44:45], 2, v53
v_and_b32 v53, 1, v0
v_lshlrev_b32 v51, 6, v51
v_lshl_add_u32 v51, v53, 4, v51
v_and_b32 v54, 1, v52
v_lshl_add_u32 v51, v54, 5, v51
v_lshrrev_b32 v54, 1, v52
v_lshl_add_u32 v51, v54, 8, v51
s_lshl_b32 s{sT}, s{sW}, 9
v_add_u32 v{vO}, s{sT}, v51
v_mov_b32 v55, 128"""); wait_flags(e, 55, 0, 56, DB)
    e("v_and_b32 v55, 31, v0\nv_lshlrev_b32 v55, 2, v55"); wait_flags(e, 55, 0, 56, DB)
    e(f"""v_cmp_ne_u32 vcc, s54, v56
v_mov_b32 v51, 0x4444
v_mov_b32 v52, 0xeeee
s_mov_b32 s30, {SC}
s_mov_b32 s31, 1
s_mov_b32 s36, 0
v_cndmask_b32 v{vI}, v51, v52, s[44:45]
s_waitcnt lgkmcnt(0)
s_barrier""")
    stamp(e, 0, cfg['stamp'])
    e("s_cbranch_vccnz CH_far")
    for md in "nf":
        if md == 'f': e.lab("CH_far")
        for w in range(3): e(f"s_cmp_eq_u32 s{sW}, {w}\ns_cbranch_scc1 CH{md}{w}_layer")
        e(f"s_branch CH{md}3_layer")

def chain_wave(e, cfg, md, w):
    N = f"CH{md}{w}"; st = "sc1" if md == 'f' else ""
    e.phys = 1; lg = Lg(e); G = [(w+i) % 4 for i in range(4)]; no = len(OWN[w]); t0 = OWN[w][0]
    def wop(k): return wreg(ROP[k]*8, 80, 8)
    def sm(d, a, b): e(f"v_smfmac_f32_16x16x64_bf16 {v(d,4)}, {v(a,4)}, {b}, v{vI}")
    def rdw(k, dst):
        for h in range(2): lg.op(f"ds_read_b128 {v(dst+4*h,4)}, v{vW} offset:{LOP[k]*2048+h*1024}", k)
    def rd(dst, off, tag): lg.op(f"ds_read_b128 {v(dst,4)}, v{vL} offset:{off}", tag)
    def zero(r0, n):
        for i in range(0, n, 2): e(f"v_mov_b64 {v(r0+i,2)}, 0")
    def gload():
        for i in range(no): e(f"buffer_load_dwordx4 {v(A0+4*t0+4*i,4)}, v{vL}, {s(WS,4)}, s40 offen offset:{1024*i} sc1")
    def gcheck():
        l, d = e.uid("gc"), e.uid("gd"); b = A0 + 4*t0; n = 0; M = ["s[94:95]", "vcc", "s[50:51]"]
        e(f"s_mov_b32 s29, 0\ns_waitcnt vmcnt({n})"); tick(11); e(f"{l}:")
        for i in range(no): e(f"v_max3_u32 v{76+i}, v{b+4*i}, v{b+4*i+1}, v{b+4*i+2}")
        for i in range(no): e(f"v_max_u32 v{76+i}, v{76+i}, v{b+4*i+3}")
        for i in range(no): e(f"v_cmp_eq_u32 {M[i]}, -1, v{76+i}")
        e("s_or_b64 s[68:69], s[94:95], vcc" + ("\ns_or_b64 s[68:69], s[68:69], s[50:51]" if no == 3 else "") + f"\ns_cbranch_scc0 {d}")
        for i in range(no): e(f"s_mov_b64 exec, {M[i]}\nbuffer_load_dwordx4 {v(b+4*i,4)}, v{vL}, {s(WS,4)}, s40 offen offset:{1024*i} sc1")
        e(f"s_mov_b64 exec, -1\ns_add_u32 s29, s29, 1\ns_add_u32 s90, s90, 1\ns_cmp_lt_u32 s29, s{sDead}\ns_waitcnt vmcnt({n})\ns_cbranch_scc1 {l}\ns_mov_b32 s{sDead}, 0\n{d}:")
        tick(12)
        for i in range(2): lg.op(f"ds_write_b128 v{vL}, {v(b+4*i,4)} offset:{2048*w+1024*i}", 'gw')
    def prep():
        zero(QA, 16); rdw(('Q',t0,0), SA); rdw(('Q',t0,1), SB)
    tr = lambda i: 70 + 2*cfg['ticks'].index(i)
    def tick(i):
        if cfg['stamp'] and w == cfg.get('tw', 0) and i in cfg.get('ticks', ()): e(f"s_memtime {s(tr(i),2)}")
    e.lab(N + "_layer")
    e(f"""s_mov_b32 s37, 0
s_lshl_b32 s43, s52, 1
s_add_u32 s43, s43, s36
s_lshl_b32 s43, s43, 8
s_lshl_b32 s42, s36, 5
s_add_u32 s42, s42, s52
s_lshl_b32 s38, s42, 20
s_add_u32 s38, s38, {KX+2048*w}
s_lshl_b32 s42, s42, 18
s_add_u32 s42, s42, {KM}""")
    def kdma():
        e(f"s_add_u32 s41, s38, {1024*w}\ns_mov_b32 m0, {8192+3072*w}")
        for i in range(NK[w]): e(f"buffer_load_dwordx4 v{vL}, {s(WS,4)}, s41 offen offset:{1024*i} sc1 lds")
    if w == 3: e(f"v_bfe_u32 v76, v{vL}, 4, 1\nv_lshlrev_b32 v76, 2, v76"); wait_flags(e, 76, "s43", 77, sleep=1)
    e(f"v_bfe_u32 v76, v{vL}, 6, 2\nv_bfe_u32 v77, v{vL}, 4, 1\nv_lshl_add_u32 v76, v76, 1, v77\nv_mul_u32_u24 v76, 1152, v76\nv_bfe_u32 v77, v{vL}, 5, 1\nv_lshl_add_u32 v76, v77, 4, v76\nv_lshrrev_b32 v77, 8, v{vL}\nv_lshl_add_u32 v76, v77, 5, v76")
    for t in sorted(set(OWN[w] + [U])): e(f"buffer_load_dwordx4 {v(A0+4*t,4)}, v76, s[32:35], 0 offen offset:{128*t}")
    e("s_barrier")
    if w < 3: kdma()
    e(f"s_add_u32 s40, s56, {1024*t0}")
    prep()
    e.lab(N + "_step")
    tick(0)
    gcheck()
    if w < 2: e(f"s_cmp_lt_u32 s37, 63\ns_cselect_b32 s40, 16384, 0\ns_add_u32 s40, s40, s38\ns_add_u32 s40, s40, {6144*w}\nv_lshlrev_b32 v7, 3, v{vL}")
    e(f"s_add_u32 s41, s38, 8192\ns_add_u32 s39, s56, {1024*U}\ns_cmp_eq_u32 s37, 0"); b0 = cfg['b0']
    if cfg['stamp'] and w == 0 and cfg.get('steps'):
        e(f"s_lshl_b32 s92, s36, 6\ns_add_u32 s92, s92, s37\ns_lshl_b32 s92, s92, 2\ns_add_u32 s92, s92, 512"); stamp(e, "s92", 1)
    from collections import defaultdict
    pre, val = defaultdict(list), defaultdict(list)
    def slot(p):
        for f in pre.pop(p, []) + val.pop(p, []): e(f) if isinstance(f, str) else f()
    def rh(k, dst, h): return lambda: lg.op(f"ds_read_b128 {v(dst+4*h,4)}, v{vW} offset:{LOP[k]*2048+h*1024}", k)
    pka = lambda d: f"v_pk_add_f32 {v(d,2)}, {v(d,2)}, {v(d+2,2)}"
    ad = lambda d: f"v_add_f32 v{d}, v{d}, v{d+2}"
    cv = lambda d, a, b: f"v_cvt_pk_bf16_f32 v{d}, v{a}, v{b}"
    z = lambda r: f"v_mov_b64 {v(r,2)}, 0"
    stg = [('Q',OWN[g][0],x) for g in G for x in range(2)]
    pos, sb = [0, 1, 8, 13, 18, 23, 28, 32], [SA, SB] + [SA]*6
    ok = lambda ts, ms: [(m,t,x) for t in ts for m in ms for x in range(2) if (m,t,x) not in LOP]
    T = [t for g in G for t in OWN[g]]
    if no == 2: T.remove(U); T.append(U)
    rest = ok(T[:2], 'K') + ok(T[:2], 'Q') + ok(T[2:], 'K') + ok(T[2:], 'Q') if no == 2 else ok(T, 'K') + ok(T, 'Q')
    seq = [stg[pos.index(p)] if p in pos else rest.pop(0) for p in range(36)] + [('V',t,x) for t in range(9) for x in range(2)]
    ra = lambda t: (lambda: rd(A0+4*t, 1024*(t - (t > U)), f"A{t}"))
    pre[b0].append(lambda: (lg.wait('gw'), e("s_barrier"), tick(1)))
    if no == 2: pre[b0+1].append(f"{'s_cmp_eq_u32 s37, 0' if cfg.get('steps') else ''}\ns_cbranch_scc1 {N}_n8\nbuffer_load_dwordx4 {v(A0+4*U,4)}, v{vL}, {s(WS,4)}, s39 offen sc1\n{N}_n8:")
    tl = [t for t in T[no:] if t != U]
    for i in range(2): pre[i].insert(0, rh(stg[2], SA, i))
    for p, t in zip([p for p in range(b0, 12) if p != 8], tl): pre[p].append(ra(t))
    for i in range(3, 8): pre[pos[i-1]] += [rh(stg[i], SA, 0), rh(stg[i], SA, 1)]
    pb = cfg['pb']
    pre[pb].append(lambda: (tick(8), lg.wait(f"A{tl[-1]}"), e("s_barrier"), tick(9)))
    for i in range(2): pre[b0+2+i].append(f"buffer_load_dwordx4 {v(SB+4*i,4)}, v{vL}, {s(WS,4)}, s41 offen offset:{1024*i} sc1")
    p8 = seq.index(('K',U,0)) - 2
    if no == 2: pre[p8+1].insert(0, lambda: (tick(14), e(f"s_waitcnt vmcnt({2 if w == 2 else 3})"), tick(15))); assert b0 + cfg['pw'] < p8 < 23
    pre[41].append(f"s_waitcnt vmcnt({0 if w == 2 else 1})"); assert cfg['pf'] > 41
    if w < 2:
        pre[b0+cfg['pw']].append(f"buffer_load_dword v7, v7, {s(WS,4)}, s40 offen sc1")
    if w == 3: pre[b0+cfg['pw']].append(f"buffer_load_dword v{vM}, off, {s(WS,4)}, s43 offset:8 sc1")
    for p, x in zip(range(26, 32), [ad(KA), ad(KA+4), ad(KA+1), ad(KA+5), cv(78, KA, KA+4), cv(79, KA+1, KA+5)]): val[p].append(x)
    pre[33].append(lambda: lg.op(f"ds_write2_b32 v{vX}, v78, v79 offset0:0 offset1:4", 'q'))
    for i in range(4): val[min(33+i, 35)].append(z(SA+2*i))
    val[36] += [ad(QA), ad(QA+1)]; val[37] += [ad(QA+4), ad(QA+5)]; val[38] += [cv(76, QA, QA+4), cv(77, QA+1, QA+5)]
    pre[39].append(lambda: lg.op(f"ds_write2_b32 v{vX}, v76, v77 offset0:8 offset1:12", 'k')); pre[42].append("s_add_u32 s39, s42, 2048")
    b3 = cfg['b3']
    pre[b3].append(lambda: (lg.all(), e("s_barrier")))
    XR = [[8, 16, 20, 24], [12, 28, 32, 36]]; F = lambda i: v(QA+4*i, 4)
    rq = [(QA+4*i, 3072+1024*i, f"F{i}") for i in range(4)] + [(XR[kt][ks], 8192+4096*kt+1024*ks, f"x{kt}{ks}") for kt in range(2) for ks in range(4)]
    for i, r in enumerate(rq): pre[b3+i].append(lambda r=r: rd(*r))
    pre[52].insert(0, lambda: lg.wait("F3")); pre[57].append(lambda: lg.wait("x10"))
    if w == 3:
        pre[15].append(f"s_lshr_b32 s41, s42, 10\ns_sub_u32 s41, s41, {(KM>>10)-F_M+4}"); pre[16].append("s_cmp_lg_u32 s37, 0\ns_cselect_b64 s[48:49], 1, 0")
        pre[cfg['pf']].append(f"s_mov_b64 exec, s[48:49]\nbuffer_store_dword v{vI}, off, {s(WS,4)}, s41 sc1\ns_mov_b64 exec, -1")
    for p, k in enumerate(seq):
        m, t, tn = k
        lg.wait(f"A{t}", k)
        sm({'Q': QA, 'K': KA, 'V': SA}[m] + 4*tn, A0+4*t, v(sb[stg.index(k)],8) if k in LOP else wop(k))
        if p < 53 and (pre[p] or val[p]): lg.wait(f"A{seq[p+1][1]}", seq[p+1])
        slot(p)
        if p == 35: tick(2)
    val[54].append(ad(SA)); val[55].append(ad(SA+1)); val[56] += [ad(SA+4), ad(SA+5)]; val[57] += [cv(42, SA, SA+1), cv(43, SA+4, SA+5)]; val[54].append(f"v_lshrrev_b32 v41, 1, v{vL}")
    if w >= cfg.get('nof', 0): pre[58+w].append(f"s_andn2_b64 exec, exec, s[44:45]\nbuffer_store_dwordx4 {F(w)}, v{vO}, {s(WS,4)}, s42 offen sc1\ns_mov_b64 exec, -1")
    if w >= cfg.get('nov', 0): pre[58+(w+2)%4].append(f"buffer_store_dwordx2 v[42:43], v41, {s(WS,4)}, s39 offen offset:{512*w} sc1")
    val[62] += ["v_mov_b32 v16, 0x3f803f80", "v_mov_b32 v17, v16"]; val[63] += ["v_mov_b64 v[18:19], v[16:17]", "v_max3_f32 v40, v76, v77, v8"]
    val[64] += ["v_max3_f32 v40, v40, v9, v10", "v_max_f32 v40, v40, v11"]; val[65] += ["v_mov_b32 v21, 0", "v_mov_b32 v22, 0"]
    wo = [('O', t, t2) for t in (0,1,2,3,4,5,8,6,7) for t2 in range(2)]; wl = [k for k in wo if k in LOP]; bufs = [44, 52, 32, 60]
    for h in range(2): pre[65].append(rh(wl[0], 44, h))
    assert all(p < 26 - (k[2] == 0) for p, k in enumerate(seq) if k[0] == 'K') and seq[35][2] == 1
    for i in range(12):
        kt, ks = i//4 - 1, i % 4
        mfma(e, v([8,12,76][kt],4), v(XR[kt][ks],4) if kt >= 0 else F(ks), F(ks), "0" if ks == 0 else None)
        lg.wait({2: "x03", 8: "x13"}.get(i)); slot(54+i)
    tick(3)
    e(f"s_cmp_eq_u32 s37, 63\ns_cbranch_scc1 {N}_end")
    e("v_max3_f32 v40, v40, v12, v13\nv_max3_f32 v41, v40, v14, v15\nv_max3_f32 v40, v40, v14, v15"); rdw(wl[1], bufs[1])
    e("v_permlane16_swap_b32 v40, v41\nv_max_f32 v40, v40, v41\nv_max_f32 v41, v40, v41"); rdw(wl[2], bufs[2])
    e("v_permlane32_swap_b32 v40, v41\nv_max_f32 v40, v40, v41\nv_mul_f32 v40, s30, v40")
    for x in (76, 8, 10, 12, 14): e(f"v_pk_fma_f32 {v(x,2)}, {v(x,2)}, s[30:31], v[40:41] op_sel_hi:[1,0,0] neg_lo:[0,0,1] neg_hi:[0,0,1]")
    e("v_exp_f32 v76, v76\nv_exp_f32 v77, v77\nv_exp_f32 v8, v8"); cvt(e, 20, 76, 77); cvt(e, 23, 76, 77)
    e("v_exp_f32 v9, v9\nv_exp_f32 v10, v10"); m16(e, v(28,4), v(16,2), v(20,2), "0")
    e("v_exp_f32 v11, v11"); m16(e, v(SA,4), v(42,2), v(20,2), "0")
    e("v_exp_f32 v12, v12"); m16(e, v(SA+4,4), v(42,2), v(22,2), "0")
    e("v_exp_f32 v13, v13\nv_exp_f32 v14, v14\nv_exp_f32 v15, v15")
    for i in range(4): cvt(e, 24+i, 8+2*i, 9+2*i)
    zero(8, 4)
    mfma(e, v(28,4), v(16,4), v(24,4)); zero(12, 4)
    mfma(e, v(SA,4), v(SB,4), v(24,4)); zero(20, 4)
    mfma(e, v(SA+4,4), v(SB+4,4), v(24,4)); e("v_rcp_f32 v40, v28"); zero(16, 4); e("s_mov_b64 exec, s[44:45]")
    for h in range(2):
        for i in (2*h, 2*h+1): e(f"v_pk_mul_f32 {v(SA+2*i,2)}, {v(SA+2*i,2)}, v[40:41] op_sel_hi:[1,0]" if h else f"v_mul_f32 v{SA+2*i}, v{SA+2*i}, v40\nv_mul_f32 v{SA+2*i+1}, v{SA+2*i+1}, v40")
        for i in (2*h, 2*h+1): cvt(e, 76+i, SA+2*i, SA+2*i+1)
        if cfg['o64']: lg.op(f"ds_write_b64 v{vO}, {v(76+2*h,2)} offset:{8*h}", 'o')
    if not cfg['o64']: lg.op(f"ds_write_b128 v{vO}, v[76:79]", 'o')
    if w < 3: e(f"s_mov_b64 exec, s[46:47]\nv_mov_b32 v41, -1\nbuffer_store_dword v41, v{vM}, {s(WS,4)}, s58 offen {st}")
    e("s_mov_b64 exec, -1"); rdw(wl[3], 60); zero(24, 8); e("v_mov_b32 v43, s31")
    lg.wait('o'); e("s_barrier")
    tick(4)
    rd(68, 0, 'o0'); rd(72, 1024, 'o1'); e("v_mov_b32 v79, s31")
    acc = lambda t: 8 + 12*(t//3 % 2) + 4*(t % 3)
    for i in range(12): pre[max(i, wo.index(wl[i//2]))].append(rh(wl[4+i//2], bufs[i//2 % 4], i % 2))
    for j in range(9):
        t = wo[2*j][1]; u = t//3; pk = 76 if u == 1 else 40
        val[2*j+3] += [ad(acc(t)), ad(acc(t)+1)] if j < 8 else [pka(acc(t))]; val[2*j+4-(j % 3 == 2)].append(cv(pk + t % 3, acc(t), acc(t)+1))
        if j % 3 == 2: pre[2*j+4].append(f"buffer_store_dwordx4 {v(pk,4)}, v{vP}, {s(WS,4)}, s{60+u} offen {st}")
    for p, r in zip((8, 10, 6, 8, 12, 14), (16, 18, 8, 10, 12, 14)): val[p].append(z(r))
    if w < 3: val[20] += [f"v_and_b32 v33, 16, v{vL}\nv_bfe_u32 v32, v{vL}, 5, 3\nv_lshlrev_b32 v33, v33, s55\nv_mov_b32 v63, 0"] + [f"v_cmp_eq_u32 vcc, {j}, v32\nv_cndmask_b32 v{60+j}, 0, v33, vcc" for j in range(3)]
    pre[16].append("s_add_u32 s43, s43, 4\ns_add_u32 s37, s37, 1"); pre[17].append(f"s_add_u32 s38, s38, {0 if cfg.get('fix') else 16384}\ns_add_u32 s42, s42, 4096")
    for p, k in enumerate(wo):
        lg.wait(f"o{k[2]}", k)
        sm(acc(k[1]), 68+4*k[2], v(bufs[wl.index(k) % 4],8) if k in LOP else wop(k))
        if p < 17: lg.wait(f"o{wo[p+1][2]}", wo[p+1])
        slot(p)
    for p in range(18, 22): slot(p)
    assert not pre and not val
    def pload():
        for i in range(4): e(f"buffer_load_dwordx4 {v(44+4*i,4)}, v{vL}, {s(WS,4)}, s59 offen offset:{1024*i} sc1")
    early = False
    tick(5)
    if w < 3:
        l, d = e.uid("pc"), e.uid("pd")
        if not early:
            e(f"s_waitcnt vmcnt({cfg['w1'][w]})" + ("\ns_barrier" if cfg['bp'] else ""))
            tick(10)
            pload()
        lg.all()
        M = ["s[48:49]", "s[50:51]", "s[94:95]", "vcc"]
        e(f"s_mov_b32 s29, 0\n{l}:")
        for i in range(4):
            e(f"s_waitcnt vmcnt({3-i})"); mfma(e, v(64,4), v(44+4*i,4), v(60,4), None if i else "0"); e(f"v_cmp_ne_u32 {M[i]}, s31, v{47+4*i}")
            if i == 2: e("s_or_b64 s[68:69], s[48:49], s[50:51]")
        e(f"s_or_b64 s[68:69], s[68:69], s[94:95]\ns_or_b64 s[68:69], s[68:69], vcc\ns_cbranch_scc0 {d}")
        for i in range(4): e(f"s_mov_b64 exec, {M[i]}\nbuffer_load_dwordx4 {v(44+4*i,4)}, v{vL}, {s(WS,4)}, s59 offen offset:{1024*i} sc1")
        e(f"s_mov_b64 exec, -1\ns_add_u32 s29, s29, 1\ns_add_u32 s91, s91, 1\ns_cmp_lt_u32 s29, s{sDead}\ns_cbranch_scc1 {l}\ns_mov_b32 s{sDead}, 0\ns_waitcnt vmcnt(0)\n{d}:")
        tick(6)
        zero(QA, 8)
        e(f"""v_permlane32_swap_b32 v64, v66
v_permlane32_swap_b32 v65, v67
v_pk_add_f32 v[64:65], v[64:65], v[66:67]
v_cvt_pk_bf16_f32 v76, v64, v65
s_mov_b64 exec, s[46:47]
buffer_store_dword v76, v{vM}, {s(WS,4)}, s57 offen {st}
s_mov_b64 exec, -1"""); zero(KA, 8)
        rdw(('Q',t0,0), SA); rdw(('Q',t0,1), SB)
    else:
        e("s_waitcnt vmcnt(0)\ns_barrier" if cfg['bp'] else "s_waitcnt vmcnt(5)"); tick(10)
        e(f"s_cmp_ge_u32 s37, 63\ns_cbranch_scc1 {N}_kv\nv_cmp_eq_u32 vcc, 0, v{vM}\ns_cbranch_vccz {N}_kv\ns_add_u32 s90, s90, 1\ns_add_u32 s41, s43, 4\nv_mov_b32 v76, 0"); wait_flags(e, 76, "s41", 77, sleep=1)
        e.lab(N + "_kv"); tick(6); prep()
    rot = f"s_mov_b32 s{sT}, s56\ns_mov_b32 s56, s57\ns_mov_b32 s57, s58\ns_mov_b32 s58, s{sT}"
    e(rot + "\ns_add_u32 s31, s31, 1")
    e(f"s_add_u32 s40, s56, {1024*t0}")
    if w < 3: kdma(); e(f"s_waitcnt vmcnt({max(NK[w] - cfg['w2x'], 0)})")
    e("s_barrier"); gload()
    if cfg['stamp'] and w == cfg.get('tw', 0) and cfg.get('ticks'):
        tk = cfg['ticks']; tick(7); e(f"s_waitcnt lgkmcnt(0)\ns_cmp_lt_u32 s37, 9\ns_cbranch_scc1 {N}_step\ns_cmp_ge_u32 s37, 59\ns_cbranch_scc1 {N}_step")
        for i in range(len(tk)-1): e(f"s_sub_u32 s{sT}, s{tr(tk[i+1])}, s{tr(tk[i])}\ns_add_u32 s{84+i}, s{84+i}, s{sT}")
    e(f"s_branch {N}_step")
    e.lab(N + "_end")
    if w < 3: e(f"s_mov_b64 exec, s[46:47]\nv_mov_b32 v40, -1\nbuffer_store_dword v40, v{vM}, {s(WS,4)}, s58 offen {st}\ns_mov_b64 exec, -1")
    e("s_waitcnt lgkmcnt(0)" + (" vmcnt(0)" if w < 3 else "") + "\ns_barrier")
    if w == 3:
        e(f"s_lshr_b32 s41, s42, 10\ns_sub_u32 s41, s41, {(KM>>10)-F_M}\ns_waitcnt vmcnt(0)\nv_mov_b32 v76, 1\ns_mov_b64 exec, 1")
        e(f"buffer_store_dword v76, off, {s(WS,4)}, s41 sc1\ns_mov_b64 exec, -1")
    e("s_waitcnt vmcnt(0)\ns_barrier")
    if cfg['stamp']:
        e("s_lshl_b32 s92, s36, 2\ns_add_u32 s92, s92, 4"); stamp(e, "s92", 1)
    e(rot + f"\ns_add_u32 s36, s36, 1\ns_cmp_lt_u32 s36, {cfg['layers']}\ns_cbranch_scc1 {N}_layer")
    if cfg['stamp']:
        for i in range(8): e(f"v_mov_b32 v{8+i}, s{84+i}")
        e(f"s_lshl_b32 s97, s2, 10\ns_add_u32 s97, s97, {STAMP+64+32*w}\ns_mov_b64 exec, 1\nbuffer_store_dwordx4 v[8:11], off, {s(WS,4)}, s97\nbuffer_store_dwordx4 v[12:15], off, {s(WS,4)}, s97 offset:16")
    e("s_branch END")
```
